```python
import torch

def _softmax(x, axis=-1):
    return torch.softmax(x, dim=axis)

def _gelu(x):
    return torch.nn.functional.gelu(x, approximate='tanh')

def _silu(x):
    return torch.nn.functional.silu(x)

def _sigmoid(x):
    return torch.sigmoid(x)

def _layernorm(x, axis=-1, eps=1e-05):
    m = x.mean(dim=axis, keepdim=True)
    v = x.var(dim=axis, keepdim=True, unbiased=False)
    return (x - m) / torch.sqrt(v + eps)

def _scatter_add(tgt, idx, src, axis=0):
    return tgt.clone().index_add_(axis, idx, src)

def _segment_sum(src, seg, n):
    out = torch.zeros((n,) + src.shape[1:], dtype=src.dtype)
    return out.index_add_(0, seg, src)

def _pad(x, pw):
    flat = tuple((v for pair in reversed(pw) for v in pair))
    return torch.nn.functional.pad(x, flat)
kernel_name = 'parallel_sum__sliding_local_dilated__mixer_gmlp__prompt'

def setup_inputs():

    _w = lambda a: (lambda t: t.to(torch.bfloat16) if t.is_floating_point() else t)(torch.as_tensor(a))

    def _A_setup():
        B, S, D = (1, 2048, 512)
        return {'x': _w((lambda *s: torch.randn(*s, dtype=torch.bfloat16) * 0.05)(B, S, D)), 'wqkv': _w((lambda *s: torch.randn(*s, dtype=torch.bfloat16) * 0.1)(D, 3 * D)), 'wo': _w((lambda *s: torch.randn(*s, dtype=torch.bfloat16) * 0.05)(D, D))}
    _A_in = _A_setup()

    def _B_setup():
        B, S, D, F = (1, 2048, 512, 1376)
        Fh = F // 2
        return {'x': _w((lambda *s: torch.randn(*s, dtype=torch.bfloat16) * 0.05)(B, S, D)), 'w_in': _w((lambda *s: torch.randn(*s, dtype=torch.bfloat16) * 0.4)(D, 2 * Fh)), 'w_sp': _w(0.01 * (lambda *s: torch.randn(*s, dtype=torch.bfloat16) * 0.4)(S, S)), 'b_sp': _w(1.0 + 0.01 * (lambda *s: torch.randn(*s, dtype=torch.bfloat16) * 0.05)(S)), 'w_out': _w((lambda *s: torch.randn(*s, dtype=torch.bfloat16) * 0.05)(Fh, D))}
    _B_in = _B_setup()
    return {'A_x': _A_in['x'], 'A_wqkv': _A_in['wqkv'], 'A_wo': _A_in['wo'], 'B_x': _B_in['x'], 'B_w_in': _B_in['w_in'], 'B_w_sp': _B_in['w_sp'], 'B_b_sp': _B_in['b_sp'], 'B_w_out': _B_in['w_out']}

def reference(A_x, A_wqkv, A_wo, B_x, B_w_in, B_w_sp, B_b_sp, B_w_out):

    def _A_ref(x, wqkv, wo):
        B, S, D = x.shape
        H = 32
        Dh = D // H
        W, dil = (8, 2)
        qkv = (lambda x, *d: x.permute(*d))((x @ wqkv).reshape(B, S, 3, H, Dh), 2, 0, 3, 1, 4)
        q, k, v = (qkv[0], qkv[1], qkv[2])
        scale = Dh ** (-0.5)
        pos = torch.arange(S)
        off = torch.arange(W) * dil
        idx = pos[:, None] - off[None, :]
        mask = idx >= 0
        idx_c = torch.where(mask, idx, 0).reshape(-1)
        kg = k[:, :, idx_c, :].reshape(B, H, S, W, Dh)
        vg = v[:, :, idx_c, :].reshape(B, H, S, W, Dh)
        logits = torch.einsum('bhsd,bhswd->bhsw', q, kg) * scale
        logits = torch.where(mask[None, None, :, :], logits, -1000000000.0)
        attn = _softmax(logits, axis=-1)
        o = torch.einsum('bhsw,bhswd->bhsd', attn, vg)
        return (lambda x, *d: x.permute(*d))(o, 0, 2, 1, 3).reshape(B, S, D) @ wo

    def _B_ref(x, w_in, w_sp, b_sp, w_out):
        B, S, D = x.shape
        F = w_in.shape[-1]
        Fh = F // 2
        z = _gelu(torch.einsum('bsd,df->bsf', x, w_in))
        z1 = z[..., :Fh].clone()
        z2 = _layernorm(z[..., Fh:], axis=-1)
        g = torch.einsum('ts,bsf->btf', w_sp, z2) + b_sp[None, :, None]
        return torch.einsum('bsf,fd->bsd', z1 * g, w_out)
    x = A_x
    xn = _layernorm(x, axis=-1)
    return x + _A_ref(xn, A_wqkv, A_wo) + _B_ref(xn, B_w_in, B_w_sp, B_b_sp, B_w_out)
```

```python
NAME = "parallel_sum__sliding_local_dilated__mixer_gmlp__prompt"

HEADER_COMMENT = """; Kernarg layout for this problem (88 bytes, ptrs only, base s[0:1]):
"""

ARG = dict(x=0, wqkv=8, wo=16, bx=24, w_in=32, w_sp=40, b_sp=48, w_out=56, out=64, dbg=72, ws=80)
NBYTES = dict(x=2048 * 512 * 2, wqkv=512 * 1536 * 2, wo=512 * 512 * 2, bx=2048 * 512 * 2,
              w_in=512 * 1376 * 2, w_sp=2048 * 2048 * 2, b_sp=2048 * 2, w_out=688 * 512 * 2,
              out=2048 * 512 * 2, dbg=256, ws=268435456)


class Kernel:
    def __init__(self, label, grid, block, lds=0, vgpr=256, sgpr=102, accum=None, wg_y=False):
        self.label = label
        self.grid = grid
        self.block = block
        self.lds = lds
        self.vgpr = vgpr
        self.sgpr = sgpr
        self.accum = accum
        self.wg_y = wg_y
        self.lines = []
        self._lab = 0

    def __call__(self, s):
        for l in s.split("\n"):
            l = l.strip()
            if not l:
                continue
            if l.endswith(":"):
                self.lines.append(l)
            else:
                self.lines.append("    " + l)

    def label_new(self, stem="L"):
        self._lab += 1
        return ".%s_%s_%d" % (stem, self.label, self._lab)

    def srd(self, sreg, base_pair, nbytes, add=0):
        if add:
            self(f"s_add_u32 s{sreg}, s{base_pair}, {add}")
            self(f"s_addc_u32 s{sreg+1}, s{base_pair+1}, 0")
        else:
            self(f"s_mov_b32 s{sreg}, s{base_pair}")
            self(f"s_mov_b32 s{sreg+1}, s{base_pair+1}")
        self(f"s_mov_b32 s{sreg+2}, {nbytes}")
        self(f"s_mov_b32 s{sreg+3}, 0x20000")

    def text(self):
        out = [f".globl {self.label}", ".p2align 8", f".type {self.label},@function", f"{self.label}:"]
        out += self.lines
        return "\n".join(out) + "\n"

    def desc(self):
        accum = self.accum if self.accum is not None else min(256, (self.vgpr + 3) // 4 * 4)
        s = f""".p2align 6
.amdhsa_kernel {self.label}
  .amdhsa_next_free_vgpr {self.vgpr}
  .amdhsa_next_free_sgpr {self.sgpr}
  .amdhsa_accum_offset {accum}
  .amdhsa_group_segment_fixed_size 0
  .amdhsa_kernarg_size 88
  .amdhsa_user_sgpr_count 2
  .amdhsa_user_sgpr_kernarg_segment_ptr 1
  .amdhsa_system_sgpr_workgroup_id_x 1
"""
        if self.wg_y:
            s += "  .amdhsa_system_sgpr_workgroup_id_y 1\n"
        s += ".end_amdhsa_kernel\n"
        return s

    def launch_line(self, single=False):
        g, b = self.grid, self.block
        if single:
            return f"; @launch grid=({g[0]},{g[1]},{g[2]}) block=({b[0]},{b[1]},{b[2]}) lds={self.lds}"
        return f"; @launch kernel={self.label} grid=({g[0]},{g[1]},{g[2]}) block=({b[0]},{b[1]},{b[2]}) lds={self.lds}"


def build_file(kernels, launches=None, single=False, extra_comment=""):
    launches = launches or kernels
    s = HEADER_COMMENT + extra_comment
    if single:
        s += launches[0].launch_line(single=True) + "\n"
    else:
        for k in launches:
            s += k.launch_line() + "\n"
    s += '.amdgcn_target "amdgcn-amd-amdhsa--gfx950"\n.text\n'
    for k in kernels:
        s += k.text()
    s += '.section .rodata,"a"\n'
    for k in kernels:
        s += k.desc()
    return s
```

```python
import sys
from asmlib import *

MB = 1 << 20
XN, H, CAT, Z2N, Z1 = 0, 4 * MB, 32 * MB, 48 * MB, 56 * MB
LOG2E = 1.4426950408889634

def f2u(x):
    import struct
    return struct.unpack("<I", struct.pack("<f", x))[0]

def wave_sum(k, v, tmp, addr):
    for m in (1, 2, 4, 8, 16, 32):
        k(f"v_xor_b32 v{addr}, {m*4}, v1")
        k(f"ds_bpermute_b32 v{tmp}, v{addr}, v{v}")
        k("s_waitcnt lgkmcnt(0)")
        k(f"v_add_f32 v{v}, v{v}, v{tmp}")

def k_ln():
    k = Kernel("ln_kernel", (512, 1, 1), (256, 1, 1), vgpr=64)
    k("s_cmp_ge_u32 s2, 512")
    k("s_cbranch_scc1 .Lln_end")
    k(f"s_load_dwordx2 s[4:5], s[0:1], {ARG['x']}")
    k(f"s_load_dwordx2 s[6:7], s[0:1], {ARG['ws']}")
    k("s_waitcnt lgkmcnt(0)")
    k.srd(8, 4, NBYTES['x'])
    k.srd(12, 6, 4 * MB, XN)
    k("v_and_b32 v2, 63, v0")
    k("v_lshlrev_b32 v1, 2, v2")
    k("v_lshrrev_b32 v3, 6, v0")
    k("s_lshl_b32 s3, s2, 2")
    k("v_add_u32 v3, s3, v3")
    k("v_lshlrev_b32 v4, 10, v3")
    k("v_lshl_add_u32 v4, v2, 4, v4")
    k("buffer_load_dwordx4 v[8:11], v4, s[8:11], 0 offen")
    k("s_waitcnt vmcnt(0)")
    for i in range(4):
        k(f"v_lshlrev_b32 v{12+2*i}, 16, v{8+i}")
        k(f"v_and_b32 v{13+2*i}, 0xffff0000, v{8+i}")
    k("v_mov_b32 v20, v12")
    for i in range(1, 8):
        k(f"v_add_f32 v20, v20, v{12+i}")
    wave_sum(k, 20, 21, 22)
    k(f"v_mul_f32 v20, {f2u(1/512)}, v20")
    for i in range(8):
        k(f"v_sub_f32 v{12+i}, v{12+i}, v20")
    k("v_mul_f32 v23, v12, v12")
    for i in range(1, 8):
        k(f"v_fmac_f32 v23, v{12+i}, v{12+i}")
    wave_sum(k, 23, 21, 22)
    k(f"v_mul_f32 v23, {f2u(1/512)}, v23")
    k(f"v_add_f32 v23, {f2u(1e-5)}, v23")
    k("v_rsq_f32 v23, v23")
    k("s_nop 0")
    for i in range(8):
        k(f"v_mul_f32 v{12+i}, v{12+i}, v23")
    k("v_lshlrev_b32 v4, 1, v4")
    k("buffer_store_dwordx4 v[12:15], v4, s[12:15], 0 offen")
    k("buffer_store_dwordx4 v[16:19], v4, s[12:15], 0 offen offset:16")
    k(".Lln_end:")
    k("s_endpgm")
    return k

def gemm_loop(k, a_pair, a_bf16, b_srd, b_bf16, ldb, K, tag):
    esz = 2 if b_bf16 else 4
    k("s_mov_b32 s40, 0")
    k("s_mov_b32 s41, 0")
    k(f".Lg_{tag}:")
    if a_bf16:
        k(f"s_load_dwordx4 s[24:27], s[{a_pair}:{a_pair+1}], 0")
    else:
        k(f"s_load_dwordx8 s[24:31], s[{a_pair}:{a_pair+1}], 0")
    for j in range(8):
        k(f"s_add_u32 s42, s41, {j*ldb*esz}")
        if b_bf16:
            k(f"buffer_load_ushort v{8+j}, v2, s[{b_srd}:{b_srd+3}], s42 offen")
        else:
            k(f"buffer_load_dword v{8+j}, v2, s[{b_srd}:{b_srd+3}], s42 offen")
    k("s_waitcnt vmcnt(0) lgkmcnt(0)")
    if a_bf16:
        for j in (3, 2, 1, 0):
            k(f"s_and_b32 s{33+2*j}, s{24+j}, 0xffff0000")
            k(f"s_lshl_b32 s{32+2*j}, s{24+j}, 16")
        abase = 32
    else:
        abase = 24
    for j in range(8):
        if b_bf16:
            k(f"v_lshlrev_b32 v{8+j}, 16, v{8+j}")
        k(f"v_fmac_f32 v4, s{abase+j}, v{8+j}")
    k(f"s_add_u32 s{a_pair}, s{a_pair}, {16 if a_bf16 else 32}")
    k(f"s_addc_u32 s{a_pair+1}, s{a_pair+1}, 0")
    k(f"s_add_u32 s41, s41, {8*ldb*esz}")
    k("s_add_u32 s40, s40, 8")
    k(f"s_cmp_lt_u32 s40, {K}")
    k(f"s_cbranch_scc1 .Lg_{tag}")

def gemm_head(k, name, N):
    nblk = (N + 255) // 256
    k(f"s_cmp_ge_u32 s2, {nblk}")
    k(f"s_cbranch_scc1 .L{name}_end")
    k("s_lshl_b32 s4, s2, 8")
    k("v_add_u32 v1, s4, v0")
    k(f"v_cmp_gt_u32 vcc, {N}, v1" if N > 64 else "")
    k("s_and_saveexec_b64 s[44:45], vcc")
    k(f"s_cbranch_execz .L{name}_end")
    k("v_mov_b32 v4, 0")

def k_gemm1(name, warg, N, coloff):
    k = Kernel(name + "_kernel", ((N + 255) // 256, 2048, 1), (256, 1, 1), vgpr=32, wg_y=True)
    gemm_head(k, name, N)
    k(f"s_load_dwordx2 s[6:7], s[0:1], {ARG[warg]}")
    k(f"s_load_dwordx2 s[8:9], s[0:1], {ARG['ws']}")
    k("s_waitcnt lgkmcnt(0)")
    k.srd(12, 6, NBYTES[warg])
    k.srd(16, 8, 2048 * 2912 * 4, H)
    k("s_lshl_b32 s4, s3, 11")
    k(f"s_add_u32 s10, s8, s4")
    k("s_addc_u32 s11, s9, 0")
    k("v_lshlrev_b32 v2, 1, v1")
    gemm_loop(k, 10, False, 12, True, N, 512, name)
    k(f"s_mul_i32 s4, s3, {2912*4}")
    k(f"s_add_u32 s4, s4, {coloff*4}")
    k("v_lshlrev_b32 v2, 2, v1")
    k("buffer_store_dword v4, v2, s[16:19], s4 offen")
    k(f".L{name}_end:")
    k("s_endpgm")
    return k

def k_attn():
    k = Kernel("attn_kernel", (256, 1, 1), (256, 1, 1), vgpr=128)
    k("s_cmp_ge_u32 s2, 256")
    k("s_cbranch_scc1 .Lattn_end")
    k(f"s_load_dwordx2 s[8:9], s[0:1], {ARG['ws']}")
    k("s_waitcnt lgkmcnt(0)")
    k.srd(12, 8, 2048 * 2912 * 4, H)
    k.srd(16, 8, 2048 * 1200 * 4, CAT)
    k("s_lshl_b32 s4, s2, 8")
    k("v_add_u32 v1, s4, v0")
    k("v_lshrrev_b32 v2, 5, v1")
    k("v_and_b32 v3, 31, v1")
    k("v_lshlrev_b32 v3, 6, v3")
    k(f"s_mov_b32 s5, {2912*4}")
    k("v_mul_lo_u32 v4, v2, s5")
    k("v_add_u32 v4, v4, v3")
    for i in range(4):
        k(f"buffer_load_dwordx4 v[{16+4*i}:{19+4*i}], v4, s[12:15], 0 offen offset:{16*i}")
    for w in range(8):
        k(f"v_subrev_u32 v5, {2*w}, v2")
        k("v_max_i32 v6, 0, v5")
        k("v_mul_lo_u32 v6, v6, s5")
        k("v_add_u32 v6, v6, v3")
        for i in range(4):
            k(f"buffer_load_dwordx4 v[{32+4*i}:{35+4*i}], v6, s[12:15], 0 offen offset:{2048+16*i}")
        k("s_waitcnt vmcnt(0)")
        k(f"v_mul_f32 v{8+w}, v16, v32")
        for d in range(1, 16):
            k(f"v_fmac_f32 v{8+w}, v{16+d}, v{32+d}")
        k(f"v_mul_f32 v{8+w}, 0.25, v{8+w}" if False else f"v_mul_f32 v{8+w}, {f2u(0.25)}, v{8+w}")
        k("v_cmp_le_i32 vcc, 0, v5")
        k(f"v_mov_b32 v7, {f2u(-1e9)}")
        k("s_nop 1")
        k(f"v_cndmask_b32 v{8+w}, v7, v{8+w}, vcc")
    k("v_max_f32 v7, v8, v9")
    for w in range(2, 8):
        k(f"v_max_f32 v7, v7, v{8+w}")
    for w in range(8):
        k(f"v_sub_f32 v{8+w}, v{8+w}, v7")
        k(f"v_mul_f32 v{8+w}, {f2u(LOG2E)}, v{8+w}")
        k(f"v_exp_f32 v{8+w}, v{8+w}")
    k("s_nop 0")
    k("v_add_f32 v7, v8, v9")
    for w in range(2, 8):
        k(f"v_add_f32 v7, v7, v{8+w}")
    k("v_rcp_f32 v7, v7")
    k("s_nop 0")
    for d in range(16):
        k(f"v_mov_b32 v{48+d}, 0")
    for w in range(8):
        k(f"v_mul_f32 v{8+w}, v{8+w}, v7")
        k(f"v_subrev_u32 v5, {2*w}, v2")
        k("v_max_i32 v6, 0, v5")
        k("v_mul_lo_u32 v6, v6, s5")
        k("v_add_u32 v6, v6, v3")
        k("v_add_u32 v6, 4096, v6")
        for i in range(4):
            k(f"buffer_load_dwordx4 v[{32+4*i}:{35+4*i}], v6, s[12:15], 0 offen offset:{16*i}")
        k("s_waitcnt vmcnt(0)")
        for d in range(16):
            k(f"v_fmac_f32 v{48+d}, v{8+w}, v{32+d}")
    k(f"s_mov_b32 s5, {1200*4}")
    k("v_mul_lo_u32 v4, v2, s5")
    k("v_add_u32 v4, v4, v3")
    for i in range(4):
        k(f"buffer_store_dwordx4 v[{48+4*i}:{51+4*i}], v4, s[16:19], 0 offen offset:{16*i}")
    k(".Lattn_end:")
    k("s_endpgm")
    return k

def gelu(k, v, t):
    c = 0.7978845608028654
    k(f"v_mul_f32 v{t}, v{v}, v{v}")
    k(f"v_mul_f32 v{t}, {f2u(-2*LOG2E*c*0.044715)}, v{t}")
    k(f"v_add_f32 v{t}, {f2u(-2*LOG2E*c)}, v{t}")
    k(f"v_mul_f32 v{t}, v{t}, v{v}")
    k(f"v_exp_f32 v{t}, v{t}")
    k("s_nop 0")
    k(f"v_add_f32 v{t}, 1.0, v{t}")
    k(f"v_rcp_f32 v{t}, v{t}")
    k("s_nop 0")
    k(f"v_mul_f32 v{v}, v{v}, v{t}")

def k_z():
    k = Kernel("z_kernel", (512, 1, 1), (256, 1, 1), vgpr=64)
    k("s_cmp_ge_u32 s2, 512")
    k("s_cbranch_scc1 .Lz_end")
    k(f"s_load_dwordx2 s[8:9], s[0:1], {ARG['ws']}")
    k("s_waitcnt lgkmcnt(0)")
    k.srd(12, 8, 2048 * 2912 * 4, H)
    k.srd(16, 8, 2048 * 688 * 4, Z1)
    k.srd(20, 8, 2048 * 688 * 4, Z2N)
    k("v_and_b32 v2, 63, v0")
    k("v_lshlrev_b32 v1, 2, v2")
    k("v_lshrrev_b32 v3, 6, v0")
    k("s_lshl_b32 s3, s2, 2")
    k("v_add_u32 v3, s3, v3")
    k(f"s_mov_b32 s5, {2912*4}")
    k("v_mul_lo_u32 v4, v3, s5")
    k("v_add_u32 v4, v4, v1")
    k(f"v_add_u32 v4, {1536*4}, v4")
    k(f"v_add_u32 v5, {688*4}, v4")
    k(f"s_mov_b32 s5, {688*4}")
    k("v_mul_lo_u32 v6, v3, s5")
    k("v_add_u32 v6, v6, v1")
    for i in range(11):
        k(f"buffer_load_dword v{10+i}, v4, s[12:15], 0 offen offset:{256*i}")
        k(f"buffer_load_dword v{30+i}, v5, s[12:15], 0 offen offset:{256*i}")
    k("s_waitcnt vmcnt(0)")
    for i in range(11):
        gelu(k, 10 + i, 7)
        gelu(k, 30 + i, 7)
    k("v_cmp_gt_u32 vcc, 48, v2")
    k("s_nop 1")
    k("v_cndmask_b32 v40, 0, v40, vcc")
    k("v_mov_b32 v50, v30")
    for i in range(1, 11):
        k(f"v_add_f32 v50, v50, v{30+i}")
    wave_sum(k, 50, 51, 52)
    k(f"v_mul_f32 v50, {f2u(1/688)}, v50")
    for i in range(11):
        k(f"v_sub_f32 v{30+i}, v{30+i}, v50")
    k("v_cndmask_b32 v40, 0, v40, vcc")
    k("v_mul_f32 v53, v30, v30")
    for i in range(1, 11):
        k(f"v_fmac_f32 v53, v{30+i}, v{30+i}")
    wave_sum(k, 53, 51, 52)
    k(f"v_mul_f32 v53, {f2u(1/688)}, v53")
    k(f"v_add_f32 v53, {f2u(1e-5)}, v53")
    k("v_rsq_f32 v53, v53")
    k("s_nop 0")
    for i in range(11):
        k(f"v_mul_f32 v{30+i}, v{30+i}, v53")
    for i in range(10):
        k(f"buffer_store_dword v{10+i}, v6, s[16:19], 0 offen offset:{256*i}")
        k(f"buffer_store_dword v{30+i}, v6, s[20:23], 0 offen offset:{256*i}")
    k("s_and_saveexec_b64 s[24:25], vcc")
    k(f"buffer_store_dword v20, v6, s[16:19], 0 offen offset:{2560}")
    k(f"buffer_store_dword v40, v6, s[20:23], 0 offen offset:{2560}")
    k(".Lz_end:")
    k("s_endpgm")
    return k

def k_gemm2():
    name = "sp"
    k = Kernel(name + "_kernel", (3, 2048, 1), (256, 1, 1), vgpr=32, wg_y=True)
    gemm_head(k, name, 688)
    k(f"s_load_dwordx2 s[6:7], s[0:1], {ARG['w_sp']}")
    k(f"s_load_dwordx2 s[8:9], s[0:1], {ARG['ws']}")
    k(f"s_load_dwordx2 s[46:47], s[0:1], {ARG['b_sp']}")
    k("s_waitcnt lgkmcnt(0)")
    k.srd(12, 8, 2048 * 688 * 4, Z2N)
    k.srd(16, 8, 2048 * 1200 * 4, CAT)
    k.srd(20, 8, 2048 * 688 * 4, Z1)
    k.srd(48, 46, NBYTES['b_sp'])
    k("s_lshl_b32 s4, s3, 12")
    k(f"s_add_u32 s10, s6, s4")
    k("s_addc_u32 s11, s7, 0")
    k("v_lshlrev_b32 v2, 2, v1")
    gemm_loop(k, 10, True, 12, False, 688, 2048, name)
    k("s_lshl_b32 s4, s3, 1")
    k("v_mov_b32 v5, s4")
    k("buffer_load_ushort v6, v5, s[48:51], 0 offen")
    k(f"s_mul_i32 s4, s3, {688*4}")
    k("buffer_load_dword v7, v2, s[20:23], s4 offen")
    k("s_waitcnt vmcnt(0)")
    k("v_lshlrev_b32 v6, 16, v6")
    k("v_add_f32 v4, v4, v6")
    k("v_mul_f32 v4, v4, v7")
    k(f"s_mul_i32 s4, s3, {1200*4}")
    k(f"s_add_u32 s4, s4, {512*4}")
    k("buffer_store_dword v4, v2, s[16:19], s4 offen")
    k(f".L{name}_end:")
    k("s_endpgm")
    return k

def k_gemm3():
    name = "fin"
    k = Kernel(name + "_kernel", (2, 2048, 1), (256, 1, 1), vgpr=32, wg_y=True)
    gemm_head(k, name, 512)
    k(f"s_load_dwordx2 s[6:7], s[0:1], {ARG['wo']}")
    k(f"s_load_dwordx2 s[8:9], s[0:1], {ARG['ws']}")
    k(f"s_load_dwordx2 s[46:47], s[0:1], {ARG['w_out']}")
    k(f"s_load_dwordx2 s[52:53], s[0:1], {ARG['x']}")
    k(f"s_load_dwordx2 s[54:55], s[0:1], {ARG['out']}")
    k("s_waitcnt lgkmcnt(0)")
    k.srd(12, 6, NBYTES['wo'])
    k.srd(16, 46, NBYTES['w_out'])
    k.srd(20, 52, NBYTES['x'])
    k.srd(48, 54, NBYTES['out'])
    k(f"s_mul_i32 s4, s3, {1200*4}")
    k(f"s_add_u32 s4, s4, {CAT}")
    k(f"s_add_u32 s10, s8, s4")
    k("s_addc_u32 s11, s9, 0")
    k("v_lshlrev_b32 v2, 1, v1")
    gemm_loop(k, 10, False, 12, True, 512, 512, name + "a")
    gemm_loop(k, 10, False, 16, True, 512, 688, name + "b")
    k("s_lshl_b32 s4, s3, 10")
    k("buffer_load_ushort v6, v2, s[20:23], s4 offen")
    k("s_waitcnt vmcnt(0)")
    k("v_lshlrev_b32 v6, 16, v6")
    k("v_add_f32 v4, v4, v6")
    k("v_cvt_pk_bf16_f32 v4, v4, v4")
    k("buffer_store_short v4, v2, s[48:51], s4 offen")
    k(f".L{name}_end:")
    k("s_endpgm")
    return k

def k_empty(name, grid=256):
    k = Kernel(name + "_kernel", (grid, 1, 1), (256, 1, 1), vgpr=8)
    k("s_endpgm")
    return k

if __name__ == "__main__":
    n_empty = int(sys.argv[2]) if len(sys.argv) > 2 else 0
    ks = [k_ln(), k_gemm1("qkv", "wqkv", 1536, 0), k_gemm1("win", "w_in", 1376, 1536), k_attn(), k_z(), k_gemm2(), k_gemm3()]
    launches = list(ks)
    if n_empty:
        e = k_empty("empty")
        ks.append(e)
        launches += [e] * n_empty
    open(sys.argv[1], "w").write(build_file(ks, launches))
```

```python
import sys
from gen_naive import *
def mk(path, pre, post):
    ks = [k_ln(), k_gemm1("qkv", "wqkv", 1536, 0), k_gemm1("win", "w_in", 1376, 1536), k_attn(), k_z(), k_gemm2(), k_gemm3()]
    e = k_empty("empty")
    launches = [e]*pre + list(ks) + [e]*post
    open(path, "w").write(build_file(ks + [e], launches))
mk("naive_pre40.s", 40, 0)
mk("naive_post40.s", 0, 40)
mk("naive_pre1.s", 1, 0)
```

```python
import sys
from asmlib import *
MB = 1 << 20
STAMP = 200 * MB
BOFF = 100 * MB

def stamp_begin(k):
    k("s_memtime s[60:61]")
    k("s_memrealtime s[62:63]")

def stamp_end(k, nw, ws_pair):
    k("s_memtime s[64:65]")
    k("s_memrealtime s[66:67]")
    k("s_waitcnt lgkmcnt(0)")
    k("s_sub_u32 s64, s64, s60")
    k("v_mov_b32 v4, s64")
    k("v_mov_b32 v5, s62")
    k("v_mov_b32 v6, s66")
    k("v_mov_b32 v7, 0")
    k.srd(68, ws_pair, 1 * MB, STAMP)
    k(f"s_mul_i32 s72, s2, {nw}")
    k("s_add_u32 s72, s72, s20")
    k("s_lshl_b32 s72, s72, 4")
    k("v_mov_b32 v8, s72")
    k("v_cmp_eq_u32 vcc, 0, v1")
    k("s_and_saveexec_b64 s[74:75], vcc")
    k("buffer_store_dwordx4 v[4:7], v8, s[68:71], 0 offen")

def common(k, name):
    k("s_cmp_ge_u32 s2, 256")
    k(f"s_cbranch_scc1 .L{name}_end")
    k(f"s_load_dwordx2 s[4:5], s[0:1], {ARG['w_sp']}")
    k(f"s_load_dwordx2 s[6:7], s[0:1], {ARG['ws']}")
    k("v_and_b32 v1, 63, v0")
    k("v_lshrrev_b32 v2, 6, v0")
    k("s_nop 0")
    k("v_readfirstlane_b32 s20, v2")
    k("s_and_b32 s21, s2, 7")
    k("s_lshr_b32 s22, s2, 3")
    k("s_and_b32 s23, s22, 3")
    k("s_lshl_b32 s21, s21, 2")
    k("s_add_u32 s21, s21, s23")
    k("s_lshr_b32 s22, s22, 2")
    k("s_waitcnt lgkmcnt(0)")
    k.srd(8, 4, NBYTES['w_sp'])
    k.srd(12, 6, 4 * MB, BOFF)

def direct(name, nw, depth, apat="f32", reps=1):
    k = Kernel(name + "_kernel", (256, 1, 1), (64 * nw, 1, 1), vgpr=512 if nw == 4 else 256, accum=256 if nw == 4 else 128)
    common(k, name)
    kper = 2048 // nw
    nch = kper // 64
    if apat == "f32":
        k("v_and_b32 v3, 31, v1")
        k("v_lshlrev_b32 v3, 12, v3")
        k("v_lshrrev_b32 v4, 5, v1")
        k("v_lshl_add_u32 v3, v4, 4, v3")
        arow2 = 32 * 4096
    elif apat == "f16":
        k("v_and_b32 v3, 15, v1")
        k("v_lshlrev_b32 v3, 12, v3")
        k("v_lshrrev_b32 v4, 4, v1")
        k("v_lshl_add_u32 v3, v4, 4, v3")
    elif apat == "r8":
        k("v_lshrrev_b32 v3, 3, v1")
        k("v_lshlrev_b32 v3, 12, v3")
        k("v_and_b32 v4, 7, v1")
        k("v_lshl_add_u32 v3, v4, 4, v3")
    k("s_lshl_b32 s24, s21, 18")
    k(f"s_mul_i32 s25, s20, {kper*2}")
    k("s_add_u32 s24, s24, s25")
    k("v_add_u32 v3, s24, v3")
    for i in range(1, 8):
        step = {"f32": 32, "f16": 16, "r8": 8}[apat]
        if i * step < 64:
            k(f"v_add_u32 v{3+i if False else 10+i}, {i*step*4096}, v3")
    k("v_mov_b32 v10, v3")
    k("v_lshlrev_b32 v9, 4, v1")
    k(f"s_mul_i32 s26, s22, {128*3072}")
    k(f"s_mul_i32 s27, s20, {kper//16*3072}")
    k("s_add_u32 s26, s26, s27")
    k("v_add_u32 v9, s26, v9")
    k("s_waitcnt lgkmcnt(0)")
    stamp_begin(k)
    nreg = 80
    first = 32
    total_regs = (512 if nw == 4 else 256)
    accum = 256 if nw == 4 else 128
    def reg(slot, i):
        r = first + slot * nreg + i * 4
        if r >= accum:
            r2 = r - accum
            return f"a[{r2}:{r2+3}]"
        return f"v[{r}:{r+3}]"
    assert first + depth * nreg <= total_regs
    def issue(c):
        slot = c % depth
        cc = c % nch
        i = 0
        if apat == "f32":
            for rb in range(2):
                for j in range(4):
                    k(f"buffer_load_dwordx4 {reg(slot,i)}, v{10+rb}, s[8:11], 0 offen offset:{cc*128+j*32}"); i += 1
        elif apat == "f16":
            for rb in range(4):
                for j in range(2):
                    k(f"buffer_load_dwordx4 {reg(slot,i)}, v{10+rb}, s[8:11], 0 offen offset:{cc*128+j*64}"); i += 1
        else:
            for rb in range(8):
                k(f"buffer_load_dwordx4 {reg(slot,i)}, v{10+rb}, s[8:11], 0 offen offset:{cc*128}"); i += 1
        for g in range(3):
            k(f"s_mov_b32 s30, {cc*12288+g*4096}")
            for j in range(4):
                k(f"buffer_load_dwordx4 {reg(slot,i)}, v9, s[12:15], s30 offen offset:{j*1024}"); i += 1
    tot = nch * reps
    for c in range(min(depth, tot)):
        issue(c)
    for c in range(tot):
        left = min(depth - 1, tot - 1 - c)
        k(f"s_waitcnt vmcnt({left*20})")
        if c + depth < tot:
            issue(c + depth)
    stamp_end(k, nw, 6)
    k(f".L{name}_end:")
    k("s_endpgm")
    return k

def dma(name, nw, depth, reps=1, nt=False):
    k = Kernel(name + "_kernel", (256, 1, 1), (64 * nw, 1, 1), vgpr=64, lds=depth * 20480)
    common(k, name)
    k("v_lshrrev_b32 v3, 3, v1")
    k("v_lshlrev_b32 v3, 12, v3")
    k("v_and_b32 v4, 7, v1")
    k("v_lshl_add_u32 v3, v4, 4, v3")
    k("s_lshl_b32 s24, s21, 18")
    k(f"s_mul_i32 s25, s20, {8*4096}")
    k("s_add_u32 s24, s24, s25")
    k("v_add_u32 v10, s24, v3")
    if nw == 4:
        k(f"v_add_u32 v11, {32*4096}, v10")
    k("v_lshlrev_b32 v9, 4, v1")
    k(f"s_mul_i32 s26, s22, {128*3072}")
    k("s_lshl_b32 s27, s20, 10")
    k("s_add_u32 s26, s26, s27")
    k("v_add_u32 v9, s26, v9")
    k("s_lshl_b32 s28, s20, 10")
    stamp_begin(k)
    per = 5 if nw == 4 else None
    fl = " nt" if nt else ""
    def issue(c):
        slot = c % depth
        cc = c % 32
        n = 0
        if nw == 4:
            for rb in range(2):
                k(f"s_add_u32 m0, s28, {slot*20480+rb*4096}")
                k(f"s_mov_b32 s30, {cc*128}")
                k(f"buffer_load_dwordx4 v{10+rb}, s[8:11], s30 offen lds{fl}"); n += 1
            for g in range(3):
                k(f"s_add_u32 m0, s28, {slot*20480+8192+g*4096}")
                k(f"s_mov_b32 s30, {cc*12288+g*4096}")
                k(f"buffer_load_dwordx4 v9, s[12:15], s30 offen lds"); n += 1
        else:
            k(f"s_add_u32 m0, s28, {slot*20480}")
            k(f"s_mov_b32 s30, {cc*128}")
            k(f"buffer_load_dwordx4 v10, s[8:11], s30 offen lds{fl}"); n += 1
            k(f"s_add_u32 m0, s28, {slot*20480+8192}")
            k(f"s_mov_b32 s30, {cc*12288}")
            k(f"buffer_load_dwordx4 v9, s[12:15], s30 offen lds"); n += 1
            if cc % 2 == 0:
                k(f"s_add_u32 m0, s28, {slot*20480+8192+4096}")
                k(f"s_mov_b32 s30, {cc*12288+8192}")
                k(f"buffer_load_dwordx4 v9, s[12:15], s30 offen lds"); n += 1
        return n
    tot = 32 * reps
    cnt = []
    for c in range(min(depth - 1, tot)):
        cnt.append(issue(c))
    for c in range(tot):
        if c + depth - 1 < tot:
            cnt.append(issue(c + depth - 1))
        left = sum(cnt[c + 1:])
        k(f"s_waitcnt vmcnt({min(left,63)})")
    stamp_end(k, nw, 6)
    k(f".L{name}_end:")
    k("s_endpgm")
    return k

if __name__ == "__main__":
    cfgs = {
        "d4_f32": direct("d4f32", 4, 3, "f32"),
        "d4_f16": direct("d4f16", 4, 3, "f16"),
        "d4_r8": direct("d4r8", 4, 3, "r8"),
        "d8_f32": direct("d8f32", 8, 2, "f32"),
        "d8_f16": direct("d8f16", 8, 2, "f16"),
        "d8_r8": direct("d8r8", 8, 2, "r8"),
        "m4_6": dma("m46", 4, 6),
        "m4_8": dma("m48", 4, 8),
        "m8_8": dma("m88", 8, 8),
        "m4_4": dma("m44", 4, 4),
    }
    for n, k in cfgs.items():
        open(f"bw_{n}.s", "w").write(build_file([k]))
```

```python
from gen_bw import *
import gen_naive as gn

def amplify(k, name, mult=50):
    idx = k.lines.index(f".L{name}_end:")
    tail = k.lines[idx:]
    k.lines = k.lines[:idx]
    k("s_sub_u32 s80, s66, s62")
    k("s_min_u32 s80, s80, 3000")
    k(f"s_mul_i32 s80, s80, {mult}")
    k(f".Lspin_{name}:")
    k("s_sleep 8")
    k("s_memrealtime s[82:83]")
    k("s_waitcnt lgkmcnt(0)")
    k("s_sub_u32 s84, s82, s66")
    k("s_cmp_lt_u32 s84, s80")
    k(f"s_cbranch_scc1 .Lspin_{name}")
    k.lines += tail

def stream(name, arg, nbytes_total, nw=4):
    k = Kernel(name + "_kernel", (256, 1, 1), (64 * nw, 1, 1), vgpr=256)
    k("s_cmp_ge_u32 s2, 256")
    k(f"s_cbranch_scc1 .L{name}_end")
    k(f"s_load_dwordx2 s[4:5], s[0:1], {ARG[arg]}")
    k(f"s_load_dwordx2 s[6:7], s[0:1], {ARG['ws']}")
    k("v_and_b32 v1, 63, v0")
    k("v_lshrrev_b32 v2, 6, v0")
    k("s_nop 0")
    k("v_readfirstlane_b32 s20, v2")
    k("s_waitcnt lgkmcnt(0)")
    k.srd(8, 4, nbytes_total)
    per_wg = nbytes_total // 256
    per_wave = per_wg // nw
    n = per_wave // 1024
    k(f"s_mul_i32 s24, s2, {per_wg}")
    k(f"s_mul_i32 s25, s20, {per_wave}")
    k("s_add_u32 s24, s24, s25")
    k("v_lshlrev_b32 v3, 4, v1")
    k("v_add_u32 v3, s24, v3")
    stamp_begin(k)
    for i in range(n):
        k(f"s_mov_b32 s30, {i*1024}")
        k(f"buffer_load_dwordx4 v[{16+4*i}:{19+4*i}], v3, s[8:11], s30 offen")
    k("s_waitcnt vmcnt(0)")
    stamp_end(k, nw, 6)
    k(f".L{name}_end:")
    k("s_endpgm")
    return k

if __name__ == "__main__":
    base = lambda: [gn.k_ln(), gn.k_gemm1("qkv", "wqkv", 1536, 0), gn.k_gemm1("win", "w_in", 1376, 1536), gn.k_attn(), gn.k_z(), gn.k_gemm2(), gn.k_gemm3()]
    p = dma("m48", 4, 8); amplify(p, "m48")
    open("probe_m48.s", "w").write(build_file([p] + base()))
    open("probe_m48_only.s", "w").write(build_file([p]))
    p = stream("st", "w_sp", NBYTES['w_sp']);
    open("bw_stream.s", "w").write(build_file([p]))
    amplify(p, "st")
    open("probe_st.s", "w").write(build_file([p] + base()))
    open("probe_st_only.s", "w").write(build_file([p]))
```

```python
from gen_bw import *
def line(name, n, kind, nw=4, loop=1):
    k = Kernel(name + "_kernel", (256, 1, 1), (64 * nw, 1, 1), vgpr=128, lds=163840 if nw==4 else 163840)
    k("s_cmp_ge_u32 s2, 256")
    k(f"s_cbranch_scc1 .L{name}_end")
    k(f"s_load_dwordx2 s[6:7], s[0:1], {ARG['ws']}")
    k("v_and_b32 v1, 63, v0")
    k("v_lshrrev_b32 v2, 6, v0")
    k("s_nop 0")
    k("v_readfirstlane_b32 s20, v2")
    for i in range(16, 128):
        k(f"v_mov_b32 v{i}, 1.0")
    k("s_waitcnt lgkmcnt(0)")
    stamp_begin(k)
    k("s_waitcnt lgkmcnt(0)")
    if loop > 1:
        k(f"s_mov_b32 s40, {loop}")
        k(f".Lloop_{name}:")
    for i in range(n // loop):
        r = 16 + (i % 16)
        if kind == "fma":
            k(f"v_fma_f32 v{r}, v{r}, v40, v41")
        elif kind == "pkfma":
            r = 16 + 2 * (i % 8)
            k(f"v_pk_fma_f32 v[{r}:{r+1}], v[{r}:{r+1}], v[40:41], v[42:43]")
        elif kind == "exp":
            k(f"v_exp_f32_e64 v{r}, v{r}")
        elif kind == "mix":
            j = i % 7
            if j in (2, 5): k(f"v_exp_f32_e64 v{r}, v{r}")
            else: k(f"v_fma_f32 v{r}, v{r}, v40, v41")
        elif kind == "mfma16":
            r = 64 + 4 * (i % 8)
            k(f"v_mfma_f32_16x16x32_bf16 v[{r}:{r+3}], v[40:43], v[44:47], v[{r}:{r+3}]")
        elif kind == "mfma32":
            r = 64 + 16 * (i % 4)
            k(f"v_mfma_f32_32x32x16_bf16 v[{r}:{r+15}], v[40:43], v[44:47], v[{r}:{r+15}]")
        elif kind == "dot2":
            k(f"v_dot2_f32_bf16 v{r}, v40, v41, v{r}")
        elif kind == "salu":
            k(f"s_add_u32 s{44 + (i%8)}, s{44 + (i%8)}, 0x12345")
    if loop > 1:
        k("s_sub_u32 s40, s40, 1")
        k("s_cmp_lg_u32 s40, 0")
        k(f"s_cbranch_scc1 .Lloop_{name}")
    k("s_nop 15")
    stamp_end(k, nw, 6)
    k(f".L{name}_end:")
    k("s_endpgm")
    return k
if __name__ == "__main__":
    import sys
    names = []
    for kind in ("fma", "pkfma", "exp", "mix", "mfma16", "dot2", "salu"):
        for nw in (4, 8):
            for loop in (1, 64):
                if nw == 8 and loop == 1 and kind not in ("fma",): continue
                n = 4096 if kind != "mix" else 7*64*9
                nm = f"ic_{kind}_{nw}_{loop}"
                open(nm + ".s", "w").write(build_file([line(nm.replace("_",""), n, kind, nw, loop)]))
                names.append(nm + ".s")
    print(" ".join(names))
    import json
    print(json.dumps(["work/"+n for n in names]))
```

```python
from gen_bw import *
import gen_naive as gn
from gen_probe import amplify
from gen_icache import line

def l2bw(name, nw=4, foot=512*1024, total=640*1024, flags="", active=256, valid=64, dma=False, depth=48, shared=True):
    k = Kernel(name + "_kernel", (256, 1, 1), (64 * nw, 1, 1), vgpr=256, lds=163840 if dma else 0)
    k(f"s_lshr_b32 s3, s2, 3")
    k(f"s_cmp_ge_u32 s3, {active//8}")
    k(f"s_cbranch_scc1 .L{name}_end")
    k(f"s_load_dwordx2 s[4:5], s[0:1], {ARG['w_sp']}")
    k(f"s_load_dwordx2 s[6:7], s[0:1], {ARG['ws']}")
    k("v_and_b32 v1, 63, v0")
    k("v_lshrrev_b32 v2, 6, v0")
    k("s_nop 0")
    k("v_readfirstlane_b32 s20, v2")
    k("s_waitcnt lgkmcnt(0)")
    k.srd(8, 4, NBYTES['w_sp'])
    k("s_and_b32 s21, s2, 7")
    k("s_lshl_b32 s21, s21, 20")
    k(f"s_mul_i32 s22, s3, {nw}")
    k("s_add_u32 s22, s22, s20")
    k(f"s_mul_i32 s22, s22, {13*1024}")
    k(f"s_and_b32 s22, s22, {foot-1}")
    k("v_lshlrev_b32 v3, 4, v1")
    k("v_add_u32 v3, s21, v3")
    if valid < 64:
        k(f"v_cmp_gt_u32 vcc, {valid}, v1")
        k("v_mov_b32 v4, 0x7fffffff")
        k("s_nop 1")
        k("v_cndmask_b32 v3, v4, v3, vcc")
    k("s_lshl_b32 s28, s20, 15")
    n = total // nw // 1024
    def sweep(cnt):
        for i in range(cnt):
            if i >= depth:
                k(f"s_waitcnt vmcnt({depth-1})")
            r = 16 + 4 * (i % depth)
            if dma:
                k(f"s_add_u32 m0, s28, {(i%32)*1024}")
                k("s_nop 0")
                k(f"buffer_load_dwordx4 v3, s[8:11], s22 offen lds {flags}")
            else:
                k(f"buffer_load_dwordx4 v[{r}:{r+3}], v3, s[8:11], s22 offen {flags}")
            k("s_add_u32 s22, s22, 1024")
            k(f"s_and_b32 s22, s22, {foot-1}")
        k("s_waitcnt vmcnt(0)")
    sweep(n // 2)
    k("s_barrier")
    stamp_begin(k)
    sweep(n)
    stamp_end(k, nw, 6)
    k(f".L{name}_end:")
    k("s_endpgm")
    return k

if __name__ == "__main__":
    cfg = {
      "l2_a": l2bw("a"),
      "l2_sc1": l2bw("b", flags="sc1"),
      "l2_half": l2bw("c", active=128),
      "l2_q": l2bw("d", active=64),
      "l2_v44": l2bw("e", valid=44),
      "l2_dma": l2bw("f", dma=True, depth=32),
      "l2_8w": l2bw("g", nw=8, depth=24),
      "l2_nt": l2bw("h", flags="nt"),
      "l2_d16": l2bw("i", depth=16),
      "l2_d8": l2bw("j", depth=8),
      "l2_f1m": l2bw("k", foot=1024*1024),
    }
    import json
    for n, k in cfg.items():
        open(n + ".s", "w").write(build_file([k]))
    print(" ".join(n + ".s" for n in cfg))
    print(json.dumps(["work/" + n + ".s" for n in cfg]))
    base = lambda: [gn.k_ln(), gn.k_gemm1("qkv", "wqkv", 1536, 0), gn.k_gemm1("win", "w_in", 1376, 1536), gn.k_attn(), gn.k_z(), gn.k_gemm2(), gn.k_gemm3()]
    p = line("icp", 4096, "fma", 4, 1); amplify(p, "icp")
    open("probe_ic.s", "w").write(build_file([p] + base()))
    p = line("icq", 4096, "fma", 4, 64); amplify(p, "icq")
    open("probe_ic64.s", "w").write(build_file([p] + base()))
```

```python
from gen_bw import *
import gen_naive as gn
from gen_probe import amplify

def line2(name, n, prefetch=0, passes=1, enc8=True, wait=False):
    k = Kernel(name + "_kernel", (256, 1, 1), (256, 1, 1), vgpr=128, lds=163840)
    k("s_cmp_ge_u32 s2, 256")
    k(f"s_cbranch_scc1 .L{name}_end")
    stamp_begin(k)
    k(f"s_load_dwordx2 s[6:7], s[0:1], {ARG['ws']}")
    k("v_and_b32 v1, 63, v0")
    k("v_lshrrev_b32 v2, 6, v0")
    if prefetch:
        k("s_getpc_b64 s[50:51]")
        k("s_lshr_b32 s52, s2, 3")
        if prefetch == 1:
            k("s_and_b32 s52, s52, 7")
            k("s_lshl_b32 s52, s52, 12")
            k("v_lshlrev_b32 v3, 4, v0")
            k("v_add_u32 v3, s52, v3")
            k("global_load_dwordx4 v[4:7], v3, s[50:51] offset:1024")
        else:
            k("v_lshlrev_b32 v3, 4, v0")
            for i in range(8):
                k("global_load_dwordx4 v[4:7], v3, s[50:51] offset:1024")
                k("v_add_u32 v3, 4096, v3")
    k("s_nop 0")
    k("v_readfirstlane_b32 s20, v2")
    for i in range(16, 64):
        k(f"v_mov_b32 v{i}, 1.0")
    k("s_waitcnt lgkmcnt(0)")
    if wait:
        k("s_waitcnt vmcnt(0)")
    if passes > 1:
        k(f"s_mov_b32 s40, {passes}")
        k(f".Lloop_{name}:")
        k("s_memtime s[60:61]")
        k("s_waitcnt lgkmcnt(0)")
    for i in range(n):
        r = 16 + (i % 16)
        if enc8:
            k(f"v_fma_f32 v{r}, v{r}, v40, v41")
        else:
            k(f"v_fmac_f32 v{r}, v40, v41")
    if passes > 1:
        k("s_sub_u32 s40, s40, 1")
        k("s_cmp_lg_u32 s40, 0")
        k(f"s_cbranch_scc1 .Lloop_{name}")
    k("s_waitcnt vmcnt(0)")
    stamp_end(k, 4, 6)
    k(f".L{name}_end:")
    k("s_endpgm")
    return k
if __name__ == "__main__":
    base = lambda: [gn.k_ln(), gn.k_gemm1("qkv", "wqkv", 1536, 0), gn.k_gemm1("win", "w_in", 1376, 1536), gn.k_attn(), gn.k_z(), gn.k_gemm2(), gn.k_gemm3()]
    open("ic2_2pass.s", "w").write(build_file([line2("a", 4000, passes=2)]))
    open("ic2_e4.s", "w").write(build_file([line2("b", 8000, enc8=False)]))
    open("ic2_2pass_big.s", "w").write(build_file([line2("c", 7000, passes=2)]))
    for nm, kw in (("pf0", dict()), ("pf1", dict(prefetch=1)), ("pf2", dict(prefetch=2)), ("pf1w", dict(prefetch=1, wait=True)), ("e4", dict(enc8=False))):
        p = line2("p" + nm, 4096, **kw); amplify(p, "p" + nm)
        open(f"probe_ic_{nm}.s", "w").write(build_file([p] + base()))
        open(f"probe_ic_{nm}_only.s", "w").write(build_file([p]))
```

```python
from gen_bw import *
import gen_naive as gn
from gen_probe import amplify

def lat(name, mode):
    k = Kernel(name + "_kernel", (256, 1, 1), (256, 1, 1), vgpr=128, lds=163840)
    k("s_cmp_ge_u32 s2, 256")
    k(f"s_cbranch_scc1 .L{name}_end")
    k("v_and_b32 v1, 63, v0")
    k("v_lshrrev_b32 v2, 6, v0")
    k("s_nop 0")
    k("v_readfirstlane_b32 s20, v2")
    if mode == "karg":
        stamp_begin(k)
        k("s_waitcnt lgkmcnt(0)")
    k(f"s_load_dwordx16 s[24:39], s[0:1], 0")
    k(f"s_load_dwordx4 s[40:43], s[0:1], 64")
    k(f"s_load_dwordx2 s[6:7], s[0:1], {ARG['ws']}")
    k("s_waitcnt lgkmcnt(0)")
    if mode != "karg":
        stamp_begin(k)
        k("s_waitcnt lgkmcnt(0)")
        k("s_lshl_b32 s3, s2, 12")
        k("v_lshlrev_b32 v3, 4, v0")
        k("v_add_u32 v3, s3, v3")
        if mode == "x":
            k("global_load_dwordx4 v[4:7], v3, s[24:25]")
        elif mode == "all":
            k("global_load_dwordx4 v[4:7], v3, s[24:25]")
            k("global_load_dwordx4 v[8:11], v3, s[26:27]")
            k("global_load_dwordx4 v[12:15], v3, s[32:33]")
            k("global_load_dwordx4 v[16:19], v3, s[34:35]")
        elif mode == "x2":
            k("global_load_dwordx4 v[4:7], v3, s[24:25]")
            k("s_waitcnt vmcnt(0)")
            k("v_add_u32 v3, 0x100000, v3")
            k("global_load_dwordx4 v[4:7], v3, s[24:25]")
        elif mode == "ws":
            k("global_load_dwordx4 v[4:7], v3, s[6:7]")
        k("s_waitcnt vmcnt(0)")
    stamp_end(k, 4, 6)
    k(f".L{name}_end:")
    k("s_endpgm")
    return k
if __name__ == "__main__":
    base = lambda: [gn.k_ln(), gn.k_gemm1("qkv", "wqkv", 1536, 0), gn.k_gemm1("win", "w_in", 1376, 1536), gn.k_attn(), gn.k_z(), gn.k_gemm2(), gn.k_gemm3()]
    for m in ("karg", "x", "all", "x2", "ws"):
        p = lat("l" + m, m); amplify(p, "l" + m, 200)
        open(f"probe_lat_{m}.s", "w").write(build_file([p] + base()))
        open(f"probe_lat_{m}_only.s", "w").write(build_file([p]))
```

```python
import re

class H:
    __slots__ = ("kind", "idx")
    def __init__(self, kind):
        self.kind = kind
        self.idx = None

TRANS = ("v_exp_f32", "v_log_f32", "v_rcp_f32", "v_rsq_f32", "v_sqrt_f32", "v_sin_f32", "v_cos_f32")

def parse_regs(tok):
    tok = tok.strip()
    neg = tok.lstrip("-").strip()
    if neg.startswith("abs(") or neg.startswith("|"):
        neg = neg.replace("abs(", "").replace(")", "").replace("|", "")
    m = re.fullmatch(r"([vas])(\d+)", neg)
    if m:
        return {(m.group(1), int(m.group(2)))}
    m = re.fullmatch(r"([vas])\[(\d+):(\d+)\]", neg)
    if m:
        return {(m.group(1), i) for i in range(int(m.group(2)), int(m.group(3)) + 1)}
    if neg == "vcc":
        return {("s", 106), ("s", 107)}
    if neg == "vcc_lo":
        return {("s", 106)}
    if neg == "vcc_hi":
        return {("s", 107)}
    if neg == "m0":
        return {("s", 124)}
    if neg in ("exec", "exec_lo", "exec_hi"):
        return {("s", 126), ("s", 127)}
    return set()

def split_ops(text):
    parts = text.split(None, 1)
    op = parts[0]
    rest = parts[1] if len(parts) > 1 else ""
    toks = []
    depth = 0
    cur = ""
    for ch in rest:
        if ch == "[":
            depth += 1
        if ch == "]":
            depth -= 1
        if ch == "," and depth == 0:
            toks.append(cur.strip())
            cur = ""
        else:
            cur += ch
    if cur.strip():
        toks.append(cur.strip())
    mods = ""
    if toks:
        last = toks[-1].split(None, 1)
        toks[-1] = last[0]
        if len(last) > 1:
            mods = last[1]
    return op, toks, mods

class Ins:
    def __init__(self, text):
        self.text = text
        op, toks, mods = split_ops(text)
        for suf in ("_e32", "_e64", "_dpp", "_sdwa"):
            if op.endswith(suf):
                base = op[: -len(suf)]
                break
        else:
            base = op
        self.op = base
        self.dpp = op.endswith("_dpp") or "row_" in mods or "quad_perm" in mods
        R = [parse_regs(t) for t in toks]
        self.w = set()
        self.r = set()
        self.cls = "other"
        self.states = 1
        self.passes = 0
        self.srcc = set()
        if base == "s_nop":
            self.cls = "nop"
            self.states = int(toks[0], 0) + 1
        elif base.startswith("v_mfma"):
            self.cls = "mfma"
            self.passes = 8 if "32x32" in base else 4
            self.w = R[0]
            self.ab = R[1] | R[2]
            self.srcc = R[3]
            self.r = self.ab | self.srcc
        elif base.startswith("ds_"):
            self.cls = "ds"
            if base.startswith("ds_read") or base.startswith("ds_bpermute") or base.startswith("ds_swizzle"):
                self.w = R[0]
                for x in R[1:]:
                    self.r |= x
            else:
                for x in R:
                    self.r |= x
        elif base.startswith("buffer_") or base.startswith("global_"):
            self.cls = "vmem"
            self.lds = (" lds" in (" " + mods)) or "lds" in base
            self.wide_store = False
            if base in ("buffer_inv", "buffer_wbl2"):
                pass
            elif "load" in base:
                if self.lds:
                    for x in R:
                        self.r |= x
                    self.r |= {("s", 124)}
                else:
                    self.w = R[0]
                    for x in R[1:]:
                        self.r |= x
            elif "atomic" in base:
                for x in R:
                    self.r |= x
                if "sc0" in mods:
                    self.w = R[0]
            else:
                for x in R:
                    self.r |= x
                self.wide_store = base.endswith("x4") or base.endswith("x3")
                self.data = R[0] if base.startswith("buffer_") else R[1]
        elif base.startswith("v_"):
            self.cls = "valu"
            self.trans = base in TRANS
            self.dot = base.startswith("v_dot")
            self.perm = base.startswith("v_permlane")
            self.rdlane = base in ("v_readfirstlane_b32", "v_readlane_b32")
            if base.startswith("v_cmp"):
                self.w = R[0]
                for x in R[1:]:
                    self.r |= x
            elif self.perm:
                self.w = R[0] | R[1]
                self.r = R[0] | R[1]
            elif base in ("v_add_co_u32", "v_addc_co_u32", "v_sub_co_u32"):
                self.w = R[0] | R[1]
                for x in R[2:]:
                    self.r |= x
            else:
                self.w = R[0]
                for x in R[1:]:
                    self.r |= x
                if base in ("v_fmac_f32", "v_dot2c_f32_bf16", "v_pk_fmac_f16") or self.dpp:
                    self.r |= R[0]
        elif base.startswith("s_"):
            self.cls = "salu"
            if base.startswith(("s_cmp", "s_cbranch", "s_branch", "s_waitcnt", "s_barrier", "s_endpgm", "s_sleep", "s_setprio", "s_bitcmp")):
                for x in R:
                    self.r |= x
            else:
                if R:
                    self.w = R[0]
                for x in R[1:]:
                    self.r |= x

def need(p, c):
    n = 0
    vw = {x for x in p.w if x[0] in "va"}
    sw = {x for x in p.w if x[0] == "s"}
    if p.cls == "valu":
        if c.cls == "mfma" and vw & c.r:
            n = max(n, 2)
        if c.cls == "valu":
            if p.trans and vw & c.r:
                n = max(n, 1)
            if (c.perm or c.dpp) and vw & c.r:
                n = max(n, 2)
            if c.rdlane and vw & c.r:
                n = max(n, 1)
            if sw & c.r:
                n = max(n, 2)
            if p.dot and (vw & (c.r | c.w)):
                same_acc = c.op == p.op and not (vw & (c.r - c.w))
                if not same_acc:
                    n = max(n, 3)
        if c.cls in ("vmem", "ds"):
            if sw & c.r:
                n = max(n, 5)
            if p.dot and vw & c.r:
                n = max(n, 3)
            if p.trans and vw & c.r:
                n = max(n, 1)
        if c.cls == "mfma" and p.dot and vw & c.r:
            n = max(n, 3)
        if c.cls == "salu" and sw & c.r:
            n = max(n, 1)
    if p.cls == "mfma":
        big = 12 if p.passes == 8 else 8
        if c.cls == "mfma":
            if p.w & c.ab:
                n = max(n, big)
            if p.w & c.srcc:
                if not (p.w == c.srcc and p.passes == c.passes):
                    n = max(n, big - 2)
            elif p.w & c.w:
                n = max(n, big)
        elif c.cls in ("valu", "ds", "vmem"):
            if p.w & (c.r | c.w):
                n = max(n, big)
            if c.cls == "valu" and p.srcc & c.w:
                n = max(n, 7 if p.passes == 8 else 3)
    if p.cls == "salu" and ("s", 124) in p.w and c.cls == "vmem" and getattr(c, "lds", False):
        n = max(n, 1)
    if p.cls == "vmem" and getattr(p, "wide_store", False):
        if p.data & c.w:
            n = max(n, 2 if c.cls == "valu" else 1)
    return n

class Prog:
    def __init__(self, name):
        self.name = name
        self.items = []
        self._lab = 0

    def I(self, text):
        for l in text.split("\n"):
            l = l.split(";")[0].strip()
            if l:
                self.items.append(("i", l, None))

    __call__ = I

    def C(self, text):
        self.items.append(("c", text, None))

    def L(self, label):
        self.items.append(("l", label, None))

    def lab(self, stem="L"):
        self._lab += 1
        return f".{stem}_{self.name}_{self._lab}"

    def VM(self, text):
        h = H("vm")
        self.items.append(("i", text, h))
        return h

    def LG(self, text):
        h = H("lg")
        self.items.append(("i", text, h))
        return h

    def W(self, *hs):
        flat = []
        for h in hs:
            if h is None:
                continue
            if isinstance(h, (list, tuple)):
                flat += [x for x in h if x is not None]
            else:
                flat.append(h)
        self.items.append(("w", flat, None))

    def W0(self, vm=False, lg=False):
        self.items.append(("w0", (vm, lg), None))

    def RAW(self, fn):
        self.items.append(("raw", fn, None))

    def resolve(self):
        out = []
        nvm = nlg = 0
        done_vm = done_lg = 0
        maxvm = 0
        maxlg = 0
        for kind, a, h in self.items:
            if kind == "i":
                out.append(("i", a))
                if h is not None:
                    if h.kind == "vm":
                        nvm += 1
                        h.idx = nvm
                        maxvm = max(maxvm, nvm - done_vm)
                    else:
                        nlg += 1
                        h.idx = nlg
                        maxlg = max(maxlg, nlg - done_lg)
            elif kind == "w":
                tv = max([x.idx for x in a if x.kind == "vm"], default=0)
                tl = max([x.idx for x in a if x.kind == "lg"], default=0)
                parts = []
                if tv > done_vm:
                    n = nvm - tv
                    parts.append(f"vmcnt({min(n, 62)})")
                    done_vm = tv
                if tl > done_lg:
                    n = nlg - tl
                    parts.append(f"lgkmcnt({min(n, 14)})")
                    done_lg = tl
                if parts:
                    out.append(("i", "s_waitcnt " + " ".join(parts)))
            elif kind == "w0":
                parts = []
                if a[0]:
                    parts.append("vmcnt(0)")
                    done_vm = nvm
                if a[1]:
                    parts.append("lgkmcnt(0)")
                    done_lg = nlg
                out.append(("i", "s_waitcnt " + " ".join(parts)))
            elif kind == "l":
                out.append(("l", a))
            elif kind == "c":
                out.append(("c", a))
            elif kind == "raw":
                out.append(("raw", a))
        self.maxvm = maxvm
        self.maxlg = maxlg
        return out

    def finalize(self):
        seq = self.resolve()
        res = []
        hist = []
        nnops = 0
        for kind, a in seq:
            if kind == "l":
                res.append(a + ":")
                continue
            if kind == "c":
                res.append("    ; " + a)
                continue
            if kind == "raw":
                res.append(a)
                continue
            c = Ins(a)
            dist = 0
            pad = 0
            for p in reversed(hist):
                n = need(p, c)
                if n > dist:
                    pad = max(pad, n - dist)
                dist += p.states
                if dist >= 20:
                    break
            if pad:
                nop = Ins(f"s_nop {pad-1}")
                res.append(f"    s_nop {pad-1}")
                hist.append(nop)
                nnops += 1
            res.append("    " + a)
            hist.append(c)
            if len(hist) > 40:
                hist = hist[-24:]
        self.nnops = nnops
        return res
```

```python
import sys, struct, argparse
from asmlib import NAME, HEADER_COMMENT, ARG, NBYTES
from prog import Prog

def f2u(x):
    return struct.unpack("<I", struct.pack("<f", x))[0]

LOG2E = 1.4426950408889634
KB = 1024
MB = 1 << 20
WS_NONCE = 0
WS_XCC = 4096
WS_FZ2N = 64 * KB
WS_FZ1 = 128 * KB
WS_FO = 192 * KB
WS_FU = 256 * KB
WS_STATS = 512 * KB
WS_Z2N = 1 * MB
WS_Z1 = 4 * MB
WS_O = 7 * MB
WS_U = 9 * MB
WS_STAMP = 12 * MB
WS_SIZE = 13 * MB
OOB = 0x80000000
SPIN_LIMIT = 200000

sWAVE, sG, sJ, sRB, sST, sMT, sNT, sNONCE, sLOCAL, sXCC = 4, 5, 6, 7, 8, 9, 10, 11, 12, 13
SX, SW, SWSP, SWS, SWO, SWOUT, SOUT, SBSP, SDBG = 16, 20, 24, 28, 32, 36, 40, 44, 48
sXOFF, sWOFF, sLX, sLW, sONES, sSPIN = 52, 53, 54, 55, 56, 57
sT0, sT1, sT2, sT3 = 58, 59, 60, 61
sK = 62
sSTAMP = 86

def srd(r):
    return f"s[{r}:{r+3}]"

def vr(b, n=4):
    return f"v[{b}:{b+n-1}]"

def ar(b, n=4):
    return f"a[{b}:{b+n-1}]"

class Gen:
    def __init__(self, opts):
        self.o = opts
        self.tail = []
        self.nstamp = 0

    def stamp(self, P, name):
        if not self.o.stamps:
            return
        i = self.nstamp_role
        self.nstamp_role += 1
        assert i < 15, "too many stamps"
        self.stamp_names.append(name)
        P("s_memrealtime s[14:15]")
        P.W0(lg=True)
        P(f"s_mov_b32 s{sSTAMP+i}, s14")
        if name in ("start", "end"):
            P("s_memtime s[14:15]")
            P.W0(lg=True)
            if name == "start":
                P(f"s_mov_b32 s{sSTAMP+15}, s14")
            else:
                P(f"s_sub_u32 s{sSTAMP+15}, s14, s{sSTAMP+15}")

    def spin(self, P, loads, check, code):
        slow, back = P.lab("slow"), P.lab("back")
        check(P)
        P(f"s_cbranch_vccnz {slow}")
        P.L(back)
        T = Prog(P.name + "t" + str(len(self.tail)))
        T.L(slow)
        T(f"s_mov_b32 s{sSPIN}, 0")
        loop = T.lab("loop")
        T.L(loop)
        T(f"s_add_u32 s{sSPIN}, s{sSPIN}, 1")
        T(f"s_cmp_gt_u32 s{sSPIN}, {SPIN_LIMIT}")
        T(f"s_cbranch_scc1 .Lfail_{code}")
        T("s_sleep 1")
        for l in loads:
            T.VM(l)
        T.W0(vm=True)
        check(T)
        T(f"s_cbranch_vccnz {loop}")
        T("s_nop 4")
        T(f"s_branch {back}")
        self.tail.append(T)
        self.fail_codes.add(code)

    def dual_store(self, P, stores):
        alt, back = P.lab("sc1"), P.lab("back")
        P(f"s_cmp_eq_u32 s{sLOCAL}, 0")
        P(f"s_cbranch_scc1 {alt}")
        hs = [P.VM(s) for s in stores]
        P.L(back)
        T = Prog(P.name + "t" + str(len(self.tail)))
        T.L(alt)
        for s in stores:
            T(s + " sc1")
        T(f"s_branch {back}")
        self.tail.append(T)
        return hs

    def half_sum(self, P, v, t):
        P(f"v_mov_b32 v{t}, v{v}")
        P(f"v_permlane32_swap_b32 v{v}, v{t}")
        P(f"v_add_f32 v{v}, v{v}, v{t}")

    def prologue(self, P):
        P("s_cmp_ge_u32 s2, 256")
        P("s_cbranch_scc1 .Lend")
        P("s_load_dwordx16 s[64:79], s[0:1], 0")
        P("s_load_dwordx4 s[80:83], s[0:1], 64")
        P("s_load_dwordx2 s[84:85], s[0:1], 80")
        P("s_getpc_b64 s[14:15]")
        P(f"s_lshr_b32 s{sJ}, s2, 3")
        P(f"s_and_b32 s{sG}, s2, 7")
        P(f"s_and_b32 s{sT0}, s{sJ}, 15")
        P(f"s_min_u32 s{sT0}, s{sT0}, CODE_PIECES-1")
        P(f"s_lshl_b32 s{sT0}, s{sT0}, 12")
        P("v_lshlrev_b32 v2, 4, v0")
        P(f"v_add_u32 v2, s{sT0}, v2")
        P.VM("global_load_dwordx4 v[92:95], v2, s[14:15]")
        P("v_and_b32 v1, 63, v0")
        P("v_lshrrev_b32 v2, 6, v0")
        P(f"s_getreg_b32 s{sXCC}, hwreg(HW_REG_XCC_ID, 0, 4)")
        P(f"v_readfirstlane_b32 s{sWAVE}, v2")
        P(f"s_and_b32 s{sST}, s{sJ}, 7")
        P(f"s_bfe_u32 s{sRB}, s{sJ}, 0x10003")
        P(f"s_lshl_b32 s{sT0}, s{sG}, 1")
        P(f"s_add_u32 s{sRB}, s{sRB}, s{sT0}")
        P(f"s_and_b32 s{sMT}, s{sJ}, 3")
        P(f"s_lshl_b32 s{sT0}, s{sG}, 2")
        P(f"s_add_u32 s{sMT}, s{sMT}, s{sT0}")
        P(f"s_lshr_b32 s{sNT}, s{sJ}, 2")
        P(f"s_mov_b32 s{sONES}, 0x3f803f80")
        P(f"s_lshl_b32 s{sLX}, s{sWAVE}, 14")
        P(f"s_lshl_b32 s{sXOFF}, s{sRB}, 2")
        P(f"s_add_u32 s{sXOFF}, s{sXOFF}, s{sWAVE}")
        P(f"s_lshl_b32 s{sXOFF}, s{sXOFF}, 15")
        P("v_lshrrev_b32 v2, 3, v1")
        P("v_lshlrev_b32 v2, 10, v2")
        P("v_lshrrev_b32 v3, 4, v1")
        P("v_and_b32 v11, 7, v1")
        P("v_xor_b32 v3, v3, v11")
        P("v_lshl_add_u32 v4, v3, 4, v2")
        P("v_xor_b32 v5, 64, v4")
        P(f"v_add_u32 v5, {8192-1024}, v5")
        P(f"v_add_u32 v6, {16384-2048}, v4")
        P(f"v_add_u32 v7, {16384-2048}, v5")
        P("v_and_b32 v2, 31, v1")
        P("v_lshlrev_b32 v3, 7, v2")
        P("v_bfe_u32 v2, v1, 1, 3")
        P("v_lshrrev_b32 v11, 5, v1")
        P("v_xor_b32 v2, v2, v11")
        P("v_lshl_add_u32 v12, v2, 4, v3")
        P(f"v_add_u32 v12, s{sLX}, v12")
        for jj in range(1, 4):
            P(f"v_xor_b32 v{12+jj}, {jj<<5}, v12")
        for i in range(4):
            P(f"v_mov_b32 v{20+i}, s{sONES}")
        P("v_mov_b32 v24, 0")
        P("v_mov_b32 v25, 0")
        P.W0(lg=True)
        def mk(r, pair, n):
            P(f"s_mov_b32 s{r}, s{pair}")
            P(f"s_mov_b32 s{r+1}, s{pair+1}")
            P(f"s_mov_b32 s{r+2}, {n}")
            P(f"s_mov_b32 s{r+3}, 0x20000")
        mk(SX, 64, NBYTES['x'])
        mk(SWS, 84, WS_SIZE)
        self.mk = mk

    def nonce_load(self, P):
        P("v_mov_b32 v3, 0")
        return P.VM(f"buffer_load_dword v30, v3, {srd(SWS)}, 0 offen sc1")

    def late_srds(self, P):
        mk = self.mk
        mk(SWSP, 74, NBYTES['w_sp'])
        mk(SWO, 68, NBYTES['wo'])
        mk(SWOUT, 78, NBYTES['w_out'])
        mk(SOUT, 80, NBYTES['out'])
        mk(SBSP, 76, NBYTES['b_sp'])
        mk(SDBG, 82, 256)

    def nonce_publish(self, P):
        skip = P.lab("nw0")
        P(f"s_cmp_lg_u32 s{sWAVE}, 0")
        P(f"s_cbranch_scc1 {skip}")
        P("s_mov_b64 exec, 1")
        P(f"s_lshl_b32 s{sT0}, s{sG}, 8")
        P(f"s_lshl_b32 s{sT1}, s{sJ}, 3")
        P(f"s_add_u32 s{sT0}, s{sT0}, s{sT1}")
        P(f"s_add_u32 s{sT0}, s{sT0}, {WS_XCC}")
        P(f"v_mov_b32 v2, s{sNONCE}")
        P(f"v_mov_b32 v3, s{sXCC}")
        P("v_mov_b32 v11, 0")
        P(f"buffer_store_dwordx2 v[2:3], v11, {srd(SWS)}, s{sT0} offen sc1")
        P("s_mov_b64 exec, -1")
        P.L(skip)
        return None

    def nonce_finish(self, P):
        skip = P.lab("nf")
        P(f"s_or_b32 s{sT0}, s2, s{sWAVE}")
        P(f"s_cmp_lg_u32 s{sT0}, 0")
        P(f"s_cbranch_scc1 {skip}")
        P("v_lshlrev_b32 v2, 4, v1")
        P(f"v_add_u32 v2, {WS_XCC}, v2")
        loads = [f"buffer_load_dwordx4 {vr(32+4*i)}, v2, {srd(SWS)}, 0 offen offset:{1024*i} sc1" for i in range(2)]
        for l in loads:
            P(l)
        P("s_waitcnt vmcnt(0)")
        def chk(Q):
            Q(f"v_xor_b32 v40, s{sNONCE}, v32")
            for r in (34, 36, 38):
                Q(f"v_xor_b32 v41, s{sNONCE}, v{r}")
                Q("v_or_b32 v40, v40, v41")
            Q("v_cmp_ne_u32 vcc, 0, v40")
        self.spin(P, loads, chk, 6)
        P(f"v_mov_b32 v2, s{sNONCE}")
        P("v_mov_b32 v3, 0")
        P("s_mov_b64 exec, 1")
        P(f"buffer_store_dword v2, v3, {srd(SWS)}, 0 offen sc1")
        P("s_mov_b64 exec, -1")
        P.L(skip)

    def xcc_loads(self):
        return [f"buffer_load_dwordx2 v[2:3], v11, {srd(SWS)}, 0 offen sc1"]

    def xcc_issue(self, P):
        P("v_and_b32 v11, 31, v1")
        P("v_lshlrev_b32 v11, 3, v11")
        P(f"s_lshl_b32 s{sT0}, s{sG}, 8")
        P(f"s_add_u32 s{sT0}, s{sT0}, {WS_XCC}")
        P(f"v_add_u32 v11, s{sT0}, v11")
        return P.VM(self.xcc_loads()[0])

    def xcc_check(self, P, h):
        P.W(h)
        self.spin(P, self.xcc_loads(), lambda Q: Q(f"v_cmp_ne_u32 vcc, s{sNONCE}, v2"), 1)
        P(f"v_cmp_ne_u32 vcc, s{sXCC}, v3")
        P("s_cmp_eq_u64 vcc, 0")
        P(f"s_cselect_b32 s{sLOCAL}, {0 if self.o.force_global else 1}, 0")

    def p1_setup(self, P, z):
        if z:
            self.mk(SW, 72, NBYTES['w_in'])
            self.NS, self.WCH, self.WROW, self.NCB = 5, 12288, 192, 3
            for p in range(3):
                P(f"v_add_u32 v2, {64*p}, v1")
                P(f"v_mul_u32_u24 v3, 5462, v2")
                P("v_lshrrev_b32 v3, 16, v3")
                P("v_mul_u32_u24 v11, 12, v3")
                P("v_sub_u32 v11, v2, v11")
                P("v_mul_u32_u24 v3, 2752, v3")
                P(f"v_lshl_add_u32 v{8+p}, v11, 4, v3")
                if p:
                    P(f"v_subrev_u32 v{8+p}, {1024*p}, v{8+p}")
                P(f"s_cmp_eq_u32 s{sST}, 7")
                P(f"s_cselect_b32 s{sT0}, 1, 15")
                P(f"v_cmp_lt_u32 vcc, s{sT0}, v11")
                P(f"v_mov_b32 v2, {OOB}")
                P(f"v_cndmask_b32 v{8+p}, v{8+p}, v2, vcc")
            P(f"s_mul_i32 s{sT0}, s{sST}, 192")
            P(f"s_add_u32 s{sT1}, s{sT0}, 1408")
            P(f"s_cmp_eq_u32 s{sST}, 7")
            P(f"s_cselect_b32 s{sT1}, 1376, s{sT1}")
            P(f"s_mul_i32 s{sT2}, s{sWAVE}, {16*2752}")
            P(f"s_add_u32 s{sWOFF}, s{sT1}, s{sT2}")
            P(f"s_add_u32 s63, s{sT0}, s{sT2}")
            P(f"s_mul_i32 s{sLW}, s{sWAVE}, 3072")
            P(f"s_add_u32 s{sLW}, s{sLW}, 65536")
            P("v_lshrrev_b32 v2, 4, v1")
            P("v_bfe_u32 v3, v1, 2, 2")
            P("v_and_b32 v11, 3, v1")
            P("v_lshlrev_b32 v11, 3, v11")
            P("v_lshrrev_b32 v16, 1, v2")
            P("v_lshl_add_u32 v16, v16, 3, v3")
            P("v_mul_u32_u24 v16, 192, v16")
            P("v_and_b32 v17, 1, v2")
            P("v_lshl_add_u32 v16, v17, 5, v16")
            P("v_add_u32 v16, v16, v11")
            P("v_add_u32 v16, 65536, v16")
            P("v_lshl_add_u32 v17, v2, 3, v3")
            P("v_mul_u32_u24 v17, 192, v17")
            P("v_add_u32 v17, v17, v11")
            P("v_add_u32 v17, 65536, v17")
            P(f"s_and_b32 s{sT0}, s{sWAVE}, 1")
            P(f"s_lshl_b32 s{sT0}, s{sT0}, 5")
            P(f"s_add_u32 s{sT0}, s{sT0}, 128")
            P(f"v_add_u32 v18, s{sT0}, v17")
            P(f"s_lshl_b32 s{sT0}, s{sWAVE}, 5")
            P(f"v_add_u32 v17, s{sT0}, v17")
        else:
            self.mk(SW, 66, NBYTES['wqkv'])
            self.NS, self.WCH, self.WROW, self.NCB = 6, 8192, 128, 2
            P("v_lshrrev_b32 v2, 3, v1")
            P("v_mul_u32_u24 v2, 3072, v2")
            P("v_bfe_u32 v3, v1, 4, 1")
            P("v_lshlrev_b32 v3, 2, v3")
            P("v_and_b32 v11, 7, v1")
            P("v_xor_b32 v3, v3, v11")
            P("v_lshl_add_u32 v8, v3, 4, v2")
            P(f"v_add_u32 v9, {8*3072-1024}, v8")
            P(f"s_lshl_b32 s{sT0}, s{sST}, 7")
            P(f"s_mul_i32 s{sT2}, s{sWAVE}, {16*3072}")
            P(f"s_add_u32 s{sWOFF}, s{sT0}, s{sT2}")
            P(f"s_lshl_b32 s{sLW}, s{sWAVE}, 11")
            P(f"s_add_u32 s{sLW}, s{sLW}, 65536")
            self.tr128_addrs(P, 16, 65536)
            P("v_lshrrev_b32 v2, 4, v1")
            P("v_bfe_u32 v3, v1, 2, 2")
            P("v_lshl_add_u32 v18, v2, 3, v3")
            P("v_lshlrev_b32 v18, 7, v18")
            P("v_lshrrev_b32 v3, 1, v3")
            P(f"s_lshr_b32 s{sT0}, s{sWAVE}, 1")
            P(f"v_xor_b32 v3, s{sT0}, v3")
            P("v_lshl_add_u32 v18, v3, 6, v18")
            P("v_and_b32 v11, 3, v1")
            P("v_lshl_add_u32 v18, v11, 3, v18")
            P(f"s_and_b32 s{sT0}, s{sWAVE}, 1")
            P(f"s_lshl_b32 s{sT0}, s{sT0}, 5")
            P(f"s_add_u32 s{sT0}, s{sT0}, 65536")
            P(f"v_add_u32 v18, s{sT0}, v18")
            P("v_and_b32 v3, 15, v1")
            P("v_xor_b32 v2, v2, v3")
            P("v_lshlrev_b32 v19, 10, v3")
            P("v_lshl_add_u32 v19, v2, 4, v19")
            P(f"v_add_u32 v19, {self.HALO}, v19")

    def tr128_addrs(self, P, dst, base, sbase=None):
        P("v_lshrrev_b32 v2, 4, v1")
        P("v_bfe_u32 v3, v1, 2, 2")
        P(f"v_lshrrev_b32 v{dst}, 1, v2")
        P(f"v_lshl_add_u32 v{dst}, v{dst}, 3, v3")
        P(f"v_lshlrev_b32 v{dst}, 7, v{dst}")
        P("v_lshrrev_b32 v3, 1, v3")
        P(f"v_lshl_add_u32 v{dst}, v3, 6, v{dst}")
        P("v_and_b32 v2, 1, v2")
        P(f"v_lshl_add_u32 v{dst}, v2, 5, v{dst}")
        P("v_and_b32 v2, 3, v1")
        P(f"v_lshl_add_u32 v{dst}, v2, 3, v{dst}")
        if sbase is not None:
            P(f"v_add_u32 v{dst}, s{sbase}, v{dst}")
        if base:
            P(f"v_add_u32 v{dst}, {base}, v{dst}")
        P(f"v_xor_b32 v{dst+1}, 64, v{dst}")

    def issue_x(self, P, c):
        P(f"s_add_u32 m0, s{sLX}, {(c % 4) * 4096}")
        P(f"s_add_u32 s{sT0}, s{sXOFF}, {c * 128}")
        return [P.VM(f"buffer_load_dwordx4 v{4+i}, {srd(SX)}, s{sT0} offen offset:{1024*i} lds") for i in range(4)]

    def issue_w(self, P, z, cc):
        gi, c = divmod(cc, 8)
        ld = 2752 if z else 3072
        P(f"s_add_u32 m0, s{sLW}, {(cc % self.NS) * self.WCH}")
        if z:
            P(f"s_add_u32 s{sT1}, s{sWOFF if gi == 0 else 63}, {c * 64 * ld}")
        else:
            P(f"s_add_u32 s{sT1}, s{sWOFF}, {c * 64 * ld + gi * 1024}")
        return [P.VM(f"buffer_load_dwordx4 v{8+p}, {srd(SW)}, s{sT1} offen offset:{1024*p} lds") for p in range(3 if z else 2)]

    def issue_halo(self, P):
        hs = []
        P(f"s_lshl_b32 s{sT2}, s{sWAVE}, 2")
        for i in range(4):
            P(f"s_add_u32 s{sT0}, s{sT2}, {i}")
            P(f"v_xor_b32 v2, s{sT0}, v1")
            P("v_lshlrev_b32 v2, 4, v2")
            P(f"s_lshl_b32 s{sT1}, s{sT0}, 10")
            P(f"s_add_u32 m0, s{sT1}, {self.HALO}")
            P(f"s_lshl_b32 s{sT3}, s{sRB}, 17")
            P(f"s_add_u32 s{sT1}, s{sT1}, s{sT3}")
            P(f"s_sub_u32 s{sT1}, s{sT1}, 16384")
            P(f"s_cmp_eq_u32 s{sRB}, 0")
            P(f"s_cselect_b32 s{sT1}, 0x7fff0000, s{sT1}")
            hs.append(P.VM(f"buffer_load_dwordx4 v2, {srd(SX)}, s{sT1} offen lds"))
        return hs

    def gemm_group(self, P, z, gi, acc, st):
        NS, WCH, WROW, NCB = self.NS, self.WCH, self.WROW, self.NCB
        first = gi == 0
        total = 8 * st["ng"]
        halo = (not z) and gi > 0
        WF = [32, 44]
        EF = [56, 60]
        XT = [64, 68]
        EA = [72, 76]
        nex = 2 if z else 1
        for e in range(nex):
            pass
        reads = {}

        def R(c, jj):
            cc = gi * 8 + c
            base = (cc % NS) * WCH
            j = c * 4 + jj
            t = []
            if first:
                t.append(f"ds_read_b128 {ar(4*j)}, v{12+jj} offset:{(c % 4) * 4096}")
            for cb in range(NCB):
                for m in range(2):
                    d = WF[j & 1] + 4 * cb + 2 * m
                    if z:
                        t.append(f"ds_read_b64_tr_b16 {vr(d,2)}, v16 offset:{base + (16*jj + 4*m) * 192 + 64*cb}")
                    else:
                        t.append(f"ds_read_b64_tr_b16 {vr(d,2)}, v{16+cb} offset:{base + (16*jj + 4*m) * 128}")
            if first:
                t.append(f"ds_read_b128 {vr(XT[j&1])}, v{12+jj} offset:{(c % 4) * 4096}")
            if jj & 1:
                j2 = jj >> 1
                for e in range(nex):
                    for m in range(2):
                        a = (17 + e) if z else 18
                        t.append(f"ds_read_b64_tr_b16 {vr(EF[e] + 2*m, 2)}, v{a} offset:{base + (32*j2 + 4*m) * WROW}")
                if halo:
                    J2 = j >> 1
                    t.append(("x", f"v_xor_b32 v2, {(J2 & 3) << 6}, v19"))
                    t.append(f"ds_read_b128 {vr(XT[0])}, v2 offset:{256 * (J2 >> 2)}")
            return t

        def M(c, jj):
            j = c * 4 + jj
            t = []
            for cb in range(NCB):
                a = acc + 16 * cb
                cin = "0" if j == 0 else vr(a, 16)
                t.append(f"v_mfma_f32_32x32x16_bf16 {vr(a,16)}, {vr(WF[j&1] + 4*cb)}, {ar(4*j)}, {cin}")
            if jj & 1:
                for e in range(nex):
                    cin = "0" if j == 1 else vr(EA[e])
                    b = vr(XT[0]) if halo else "v[20:23]"
                    t.append(f"v_mfma_f32_16x16x32_bf16 {vr(EA[e])}, {vr(EF[e])}, {b}, {cin}")
            v = []
            if first:
                for i in range(4):
                    v.append(f"v_dot2c_f32_bf16 v24, s{sONES}, v{XT[j&1]+i}")
                    v.append(f"v_dot2c_f32_bf16 v25, v{XT[j&1]+i}, v{XT[j&1]+i}")
            if halo and gi == 1 and (jj & 1):
                for i in range(4):
                    v.append(f"v_dot2c_f32_bf16 v80, s{sONES}, v{XT[0]+i}")
                    v.append(f"v_dot2c_f32_bf16 v81, v{XT[0]+i}, v{XT[0]+i}")
            return t, v

        def emit_reads(lst):
            hs = []
            for x in lst:
                if isinstance(x, tuple):
                    P(x[1])
                else:
                    hs.append(P.LG(x))
            return hs

        def step(rd, mm):
            hs = []
            mf, va = mm if mm else ([], [])
            if not mf:
                return emit_reads(rd)
            n = len(mf)
            per = (len(rd) + n - 1) // n
            pv = (len(va) + n - 1) // n
            for i, m in enumerate(mf):
                P(m)
                hs += emit_reads(rd[i * per:(i + 1) * per])
                for x in va[i * pv:(i + 1) * pv]:
                    P(x)
            return hs

        prev = None
        allr = []
        for c in range(8):
            cc = gi * 8 + c
            P.C(f"group {gi} chunk {c}")
            P.W(allr, st["hw"][cc], st["hx"][c] if first else None, st.get("pre") if cc == 0 else None)
            if cc == 0:
                P(f"v_add_u32 v30, 1, v30")
                P(f"v_readfirstlane_b32 s{sNONCE}, v30")
            P("s_barrier")
            if cc == 0:
                st["hn"] = self.nonce_publish(P)
            if c >= 1:
                if first and c + 3 < 8:
                    st["hx"][c + 3] = self.issue_x(P, c + 3)
                if cc - 1 + NS < total:
                    st["hw"][cc - 1 + NS] = self.issue_w(P, z, cc - 1 + NS)
                if first and (not z) and c == 5:
                    st["hh"] = self.issue_halo(P)
            for jj in range(4):
                rd = R(c, jj)
                if prev is not None:
                    P.W(prev[0])
                    hs = step(rd, M(*prev[1]))
                else:
                    hs = step(rd, None)
                prev = (hs, (c, jj))
                allr = hs
        P.W(prev[0])
        step([], M(*prev[1]))
        CS = self.CS + (gi & 1) * 512
        P("s_mov_b32 exec_lo, 0x00010001")
        P("s_mov_b32 exec_hi, 0x00010001")
        hs = []
        for e in range(nex):
            hs.append(P.LG(f"ds_write_b128 v{82+e}, {vr(EA[e])} offset:{CS}"))
        P("s_mov_b64 exec, -1")
        P.W(hs)
        if (not z) and gi == 0:
            P.W(st["hh"])
            skip = P.lab("ones")
            P(f"s_cmp_lg_u32 s{sWAVE}, 0")
            P(f"s_cbranch_scc1 {skip}")
            P("v_lshlrev_b32 v2, 4, v1")
            P(f"ds_write_b128 v2, v[20:23] offset:{self.HALO}" if self.HALO < 65536 else f"v_add_u32 v2, {self.HALO}, v2\nds_write_b128 v2, v[20:23]")
            P("s_waitcnt lgkmcnt(0)")
            P.L(skip)
        P("s_barrier")
        cc = gi * 8 + 8
        if cc - 1 + NS < total:
            st["hw"][cc - 1 + NS] = self.issue_w(P, z, cc - 1 + NS)
        return CS

    def cs_addrs(self, P, z):
        P("v_lshrrev_b32 v2, 4, v1")
        P("v_lshlrev_b32 v2, 4, v2")
        P(f"s_lshl_b32 s{sT0}, s{sWAVE}, 6")
        P(f"s_add_u32 s{sT0}, s{sT0}, {self.CSB}")
        P(f"v_add_u32 v82, s{sT0}, v2")
        if z:
            P(f"s_and_b32 s{sT0}, s{sWAVE}, 1")
            P(f"s_lshl_b32 s{sT0}, s{sT0}, 6")
            P(f"s_add_u32 s{sT0}, s{sT0}, {self.CSB + 256}")
            P(f"v_add_u32 v83, s{sT0}, v2")
        P("v_lshrrev_b32 v2, 5, v1")
        P("v_lshlrev_b32 v84, 4, v2")
        P(f"v_add_u32 v84, {self.CSB}, v84")

    def ln_params(self, P, vs, vq, dst, n, t):
        P(f"v_mul_f32 v{dst}, {f2u(-1.0/n)}, v{vs}")
        P(f"v_mul_f32 v{t}, {f2u(1.0/n)}, v{vq}")
        P(f"v_fma_f32 v{t}, -v{dst}, v{dst}, v{t}")
        P(f"v_max_f32 v{t}, 0, v{t}")
        P(f"v_add_f32 v{t}, {f2u(1e-5)}, v{t}")
        P(f"v_rsq_f32 v{dst+1}, v{t}")

    def fold(self, P, acc, nq, CS, mr=26, T=32):
        hs = [P.LG(f"ds_read_b128 {vr(T + 4*q)}, v84 offset:{CS + 32*q}") for q in range(nq)]
        for q in range(nq):
            P.W(hs[q])
            for p in range(2):
                a = vr(acc + 4*q + 2*p, 2)
                P(f"v_pk_fma_f32 {a}, {vr(T + 4*q + 2*p, 2)}, {vr(mr,2)}, {a} op_sel_hi:[1,0,1]")
        for q in range(nq):
            for p in range(2):
                a = vr(acc + 4*q + 2*p, 2)
                P(f"v_pk_mul_f32 {a}, {a}, {vr(mr,2)} op_sel:[0,1] op_sel_hi:[1,1]")

    def gelu(self, P, acc, npairs, stats, T=32):
        for b in range(0, npairs, 4):
            ys = [acc + 2 * (b + i) for i in range(4)]
            ts = [T + 2 * i for i in range(4)]
            for y, t in zip(ys, ts):
                P(f"v_pk_mul_f32 {vr(t,2)}, {vr(y,2)}, {vr(y,2)}")
            for y, t in zip(ys, ts):
                P(f"v_pk_fma_f32 {vr(t,2)}, {vr(t,2)}, v[28:29], v[28:29] op_sel:[0,0,1] op_sel_hi:[1,0,1]")
            for y, t in zip(ys, ts):
                P(f"v_pk_mul_f32 {vr(t,2)}, {vr(t,2)}, {vr(y,2)}")
            for y, t in zip(ys, ts):
                P(f"v_exp_f32 v{t}, v{t}")
                P(f"v_exp_f32 v{t+1}, v{t+1}")
            for y, t in zip(ys, ts):
                P(f"v_pk_add_f32 {vr(t,2)}, {vr(t,2)}, 1.0 op_sel_hi:[1,0]")
            for y, t in zip(ys, ts):
                P(f"v_rcp_f32 v{t}, v{t}")
                P(f"v_rcp_f32 v{t+1}, v{t+1}")
            for y, t in zip(ys, ts):
                P(f"v_pk_mul_f32 {vr(y,2)}, {vr(y,2)}, {vr(t,2)}")
            if stats:
                for i, y in enumerate(ys):
                    if b == 0 and i == 0:
                        P(f"v_pk_mul_f32 v[88:89], {vr(y,2)}, {vr(y,2)}")
                        P(f"v_pk_add_f32 v[86:87], {vr(y,2)}, 0 op_sel_hi:[1,0]")
                    else:
                        P(f"v_pk_fma_f32 v[88:89], {vr(y,2)}, {vr(y,2)}, v[88:89]")
                        P(f"v_pk_add_f32 v[86:87], {vr(y,2)}, v[86:87]")

    WSPREG = [("a", 128), ("a", 160), ("a", 192), ("a", 224), ("v", 192), ("v", 224), ("a", 0), ("a", 32)]

    def wsp_reg(self, j, tb):
        k, b = self.WSPREG[(j >> 3) * 2 + tb]
        b += 4 * (j & 7)
        return f"{k}[{b}:{b+3}]"

    def wsp_setup(self, P):
        P("v_lshrrev_b32 v2, 4, v1")
        P("v_and_b32 v3, 15, v1")
        P("v_xor_b32 v3, v3, v2")
        P("v_lshlrev_b32 v2, 12, v2")
        P("v_lshl_add_u32 v4, v3, 4, v2")
        for i in range(1, 4):
            P(f"v_xor_b32 v{4+i}, {i << 6}, v4")
            P(f"v_add_u32 v{4+i}, {i * (16384 - 1024)}, v{4+i}")
        P("v_and_b32 v2, 31, v1")
        P("v_lshlrev_b32 v12, 8, v2")
        P("v_and_b32 v2, 15, v1")
        P("v_lshrrev_b32 v3, 5, v1")
        P("v_xor_b32 v2, v2, v3")
        P("v_lshl_add_u32 v12, v2, 4, v12")
        P(f"v_add_u32 v12, s{sLX}, v12")
        P(f"s_lshl_b32 s{sXOFF}, s{sMT}, 18")
        P(f"s_lshl_b32 s{sT0}, s{sWAVE}, 10")
        P(f"s_add_u32 s{sXOFF}, s{sXOFF}, s{sT0}")

    def wsp_issue(self, P, gq):
        kq, tb = gq >> 1, gq & 1
        hs = []
        for hf in range(2):
            P(f"s_add_u32 m0, s{sLX}, {(gq & 1) * 8192 + hf * 4096}")
            P(f"s_add_u32 s{sT0}, s{sXOFF}, {(32 * tb + 16 * hf) * 4096 + kq * 256}")
            hs += [P.VM(f"buffer_load_dwordx4 v{4+i}, {srd(SWSP)}, s{sT0} offen offset:{1024*i} lds") for i in range(4)]
        return hs

    def wsp_read(self, P, gq):
        hs = []
        for jj in range(8):
            a = 12 if jj == 0 else 13 + (jj & 1)
            if jj:
                P(f"v_xor_b32 v{a}, {jj << 5}, v12")
            hs.append(P.LG(f"ds_read_b128 {self.wsp_reg((gq >> 1) * 8 + jj, gq & 1)}, v{a} offset:{(gq & 1) * 8192}"))
        return hs

    def wsp_simple(self, P):
        self.wsp_setup(P)
        h = {0: self.wsp_issue(P, 0), 1: self.wsp_issue(P, 1)}
        for gq in range(8):
            P.W(h[gq])
            r = self.wsp_read(P, gq)
            P.W(r)
            if gq + 2 < 8:
                h[gq + 2] = self.wsp_issue(P, gq + 2)

    def role_z(self, P):
        self.CSB, self.CS = 65536 + 61440, 0
        TR = self.CSB + 1024
        self.p1_setup(P, True)
        st = dict(ng=2, hx={}, hw={})
        st["pre"] = self.nonce_load(P)
        for c in range(5):
            st["hw"][c] = self.issue_w(P, True, c)
            if c < 4:
                st["hx"][c] = self.issue_x(P, c)
        self.late_srds(P)
        self.cs_addrs(P, True)
        P(f"v_mov_b32 v28, {f2u(-2*LOG2E*0.7978845608028654*0.044715)}")
        P(f"v_mov_b32 v29, {f2u(-2*LOG2E*0.7978845608028654)}")
        self.stamp(P, "issued")
        CS = self.gemm_group(P, True, 0, 96, st)
        self.stamp(P, "gemm_a")
        hx = self.xcc_issue(P)
        self.half_sum(P, 24, 85)
        self.half_sum(P, 25, 85)
        self.ln_params(P, 24, 25, 26, 512, 85)
        self.fold(P, 96, 12, CS)
        self.gelu(P, 96, 24, True)
        P("v_add_f32 v86, v86, v87")
        P("v_add_f32 v88, v88, v89")
        self.half_sum(P, 86, 85)
        self.half_sum(P, 88, 85)
        self.xcc_check(P, hx)
        P(f"v_mov_b32 v87, s{sNONCE}")
        P(f"v_mov_b32 v89, s{sNONCE}")
        P(f"s_lshl_b32 s{sT0}, s{sRB}, 2")
        P(f"s_add_u32 s{sT0}, s{sT0}, s{sWAVE}")
        P(f"s_lshl_b32 s{sK}, s{sT0}, 12")
        P(f"s_add_u32 s{sK}, s{sK}, {WS_STATS}")
        P(f"s_lshl_b32 s{sT0}, s{sST}, 9")
        P(f"s_add_u32 s{sT2}, s{sK}, s{sT0}")
        P("v_lshlrev_b32 v90, 4, v1")
        P("s_mov_b32 exec_hi, 0")
        self.dual_store(P, [f"buffer_store_dwordx4 v[86:89], v90, {srd(SWS)}, s{sT2} offen"])
        P("s_mov_b64 exec, -1")
        self.stamp(P, "stats_pub")
        CS = self.gemm_group(P, True, 1, 144, st)
        self.stamp(P, "gemm_b")
        loads = [f"buffer_load_dwordx4 {vr(32+4*i)}, v90, {srd(SWS)}, s{sK} offen offset:{1024*i} sc1" for i in range(4)]
        P.W([P.VM(l) for l in loads])
        def chk(Q):
            Q(f"v_xor_b32 v48, s{sNONCE}, v33")
            for r in (35, 37, 39, 41, 43, 45, 47):
                Q(f"v_xor_b32 v49, s{sNONCE}, v{r}")
                Q("v_or_b32 v48, v48, v49")
            Q("v_cmp_ne_u32 vcc, 0, v48")
        self.spin(P, loads, chk, 2)
        P("v_add_f32 v32, v32, v36")
        P("v_add_f32 v40, v40, v44")
        P("v_add_f32 v34, v34, v38")
        P("v_add_f32 v42, v42, v46")
        P("v_add_f32 v32, v32, v40")
        P("v_add_f32 v34, v34, v42")
        self.half_sum(P, 32, 85)
        self.half_sum(P, 34, 85)
        self.ln_params(P, 32, 34, 50, 688, 85)
        P("v_mul_f32 v50, v50, v51")
        for p in range(24):
            a = vr(96 + 2*p, 2)
            P(f"v_pk_fma_f32 {a}, {a}, v[50:51], v[50:51] op_sel:[0,1,0] op_sel_hi:[1,1,0]")
        for p in range(24):
            P(f"v_cvt_pk_bf16_f32 v{96+p}, v{96+2*p}, v{97+2*p}")
        P("v_and_b32 v2, 31, v1")
        P("v_mul_u32_u24 v2, 200, v2")
        P("v_lshrrev_b32 v3, 5, v1")
        P("v_lshl_add_u32 v2, v3, 3, v2")
        P(f"s_mul_i32 s{sT0}, s{sWAVE}, 6400")
        P(f"s_add_u32 s{sT0}, s{sT0}, {TR}")
        P(f"v_add_u32 v2, s{sT0}, v2")
        hs = [P.LG(f"ds_write_b64 v2, {vr(96+2*q,2)} offset:{(q >> 2) * 64 + (q & 3) * 16}") for q in range(12)]
        P("v_lshrrev_b32 v3, 4, v1")
        P("v_bfe_u32 v11, v1, 2, 2")
        P("v_lshrrev_b32 v52, 1, v3")
        P("v_lshl_add_u32 v52, v52, 3, v11")
        P("v_mul_u32_u24 v52, 200, v52")
        P("v_and_b32 v3, 1, v3")
        P("v_lshl_add_u32 v52, v3, 5, v52")
        P("v_and_b32 v3, 3, v1")
        P("v_lshl_add_u32 v52, v3, 3, v52")
        P(f"v_add_u32 v52, s{sT0}, v52")
        P.W(hs)
        hs = []
        for t in range(2):
            for cb in range(3):
                for m in range(2):
                    hs.append(P.LG(f"ds_read_b64_tr_b16 {vr(120 + (t*3+cb)*4 + 2*m, 2)}, v52 offset:{(16*t + 4*m) * 200 + 64*cb}"))
        P(f"s_mul_i32 s{sT0}, s{sST}, 393216")
        P(f"s_lshl_b32 s{sT1}, s{sRB}, 2")
        P(f"s_add_u32 s{sT1}, s{sT1}, s{sWAVE}")
        P(f"s_mul_i32 s{sT2}, s{sT1}, 6144")
        P(f"s_add_u32 s{sT0}, s{sT0}, s{sT2}")
        P(f"s_add_u32 s{sT0}, s{sT0}, {WS_Z2N}")
        P(f"s_add_u32 s{sT2}, s{sT0}, 3072")
        hst = []
        for i in range(6):
            P.W(hs[2*i+1])
            hst.append(P.VM(f"buffer_store_dwordx4 {vr(120+4*i)}, v90, {srd(SWS)}, s{sT0 if i < 3 else sT2} offen offset:{1024*(i%3)} sc1"))
        self.stamp(P, "z2n_st")
        self.fold(P, 144, 12, CS)
        self.gelu(P, 144, 24, False)
        for p in range(24):
            P(f"v_cvt_pk_bf16_f32 v{144+p}, v{144+2*p}, v{145+2*p}")
        P.W(hst)
        P(f"s_lshl_b32 s{sT0}, s{sST}, 6")
        P(f"s_lshl_b32 s{sT1}, s{sRB}, 2")
        P(f"s_add_u32 s{sT1}, s{sT1}, s{sWAVE}")
        P(f"s_add_u32 s{sT0}, s{sT0}, s{sT1}")
        P(f"s_lshl_b32 s{sT0}, s{sT0}, 7")
        P(f"s_add_u32 s{sT0}, s{sT0}, {WS_FZ2N}")
        P(f"v_mov_b32 v2, s{sNONCE}")
        P("v_mov_b32 v3, 0")
        P("s_mov_b64 exec, 1")
        P.VM(f"buffer_store_dword v2, v3, {srd(SWS)}, s{sT0} offen sc1")
        P("s_mov_b64 exec, -1")
        self.stamp(P, "z2n_flag")
        P(f"s_mul_i32 s{sT2}, s{sT1}, {48*1024}")
        P(f"s_mul_i32 s{sT0}, s{sST}, 6144")
        P(f"s_add_u32 s{sT0}, s{sT0}, s{sT2}")
        P(f"s_add_u32 s{sT0}, s{sT0}, {WS_Z1}")
        P(f"s_add_u32 s{sT2}, s{sT0}, 3072")
        hz1 = self.dual_store(P, [f"buffer_store_dwordx4 {vr(144+4*i)}, v90, {srd(SWS)}, s{sT0 if i < 3 else sT2} offen offset:{1024*(i%3)}" for i in range(6)])
        P(f"s_lshl_b32 s63, s{sT1}, 7")
        P(f"s_lshl_b32 s{sT0}, s{sST}, 2")
        P(f"s_add_u32 s63, s63, s{sT0}")
        P(f"s_add_u32 s63, s63, {WS_FZ1}")
        self.wsp_simple(P)
        self.stamp(P, "wsp")
        self.phase23(P, hz1, st["hn"])

    def role_a(self, P):
        self.HALO = 114688
        KBUF, VBUF = 131072, 65536
        self.CSB, self.CS = KBUF + 20736 + 256, 0
        self.CSB = (self.CSB + 255) // 256 * 256
        assert self.CSB + 1024 <= 163840
        self.p1_setup(P, False)
        st = dict(ng=3, hx={}, hw={})
        st["pre"] = self.nonce_load(P)
        for c in range(6):
            st["hw"][c] = self.issue_w(P, False, c)
            if c < 4:
                st["hx"][c] = self.issue_x(P, c)
        self.late_srds(P)
        self.cs_addrs(P, False)
        P("v_mov_b32 v80, 0")
        P("v_mov_b32 v81, 0")
        self.stamp(P, "issued")
        CS = self.gemm_group(P, False, 0, 96, st)
        self.stamp(P, "gemm_q")
        hx = self.xcc_issue(P)
        self.half_sum(P, 24, 85)
        self.half_sum(P, 25, 85)
        self.ln_params(P, 24, 25, 26, 512, 85)
        self.fold(P, 96, 8, CS)
        for p in range(16):
            P(f"v_cvt_pk_bf16_f32 v{160+p}, v{96+2*p}, v{97+2*p}")
        for cb in range(2):
            for i in range(4):
                P(f"v_permlane32_swap_b32 v{160+8*cb+i}, v{160+8*cb+4+i}")
        self.xcc_check(P, hx)
        QD = [0, 1, 4, 5, 2, 3, 6, 7]
        P("v_and_b32 v2, 31, v1")
        P(f"s_lshl_b32 s{sT0}, s{sWAVE}, 5")
        P(f"v_add_u32 v2, s{sT0}, v2")
        P("v_lshrrev_b32 v3, 5, v1")
        P("v_mul_u32_u24 v176, 144, v2")
        P("v_mul_u32_u24 v177, 272, v2")
        P("v_lshl_add_u32 v178, v3, 3, v176")
        P(f"v_add_u32 v178, {KBUF + 16*144}, v178")
        P("v_lshl_add_u32 v179, v3, 4, v177")
        P(f"v_add_u32 v179, {VBUF + 16*272}, v179")
        P("v_lshl_add_u32 v176, v3, 5, v176")
        P(f"v_add_u32 v176, {KBUF + 2*144}, v176")
        P("v_lshl_add_u32 v177, v3, 6, v177")
        P(f"v_add_u32 v177, {VBUF + 2*272}, v177")
        P("v_and_b32 v2, 15, v1")
        P("v_lshrrev_b32 v3, 4, v1")
        P("v_mul_u32_u24 v180, 144, v2")
        P("v_lshl_add_u32 v180, v3, 3, v180")
        P(f"s_lshl_b32 s{sT0}, s{sWAVE}, 5")
        P(f"s_add_u32 s{sT0}, s{sT0}, {KBUF}")
        P(f"v_add_u32 v180, s{sT0}, v180")
        P("v_mul_u32_u24 v181, 272, v2")
        P("v_lshl_add_u32 v181, v3, 4, v181")
        P(f"s_lshl_b32 s{sT0}, s{sWAVE}, 6")
        P(f"s_add_u32 s{sT0}, s{sT0}, {VBUF}")
        P(f"v_add_u32 v181, s{sT0}, v181")

        def halo_fold(P):
            for r in range(4):
                P(f"v_mov_b32_dpp v{76+r}, v{72+r} row_newbcast:0 row_mask:0xf bank_mask:0xf")
            for p in range(2):
                P(f"v_pk_fma_f32 {vr(72+2*p,2)}, {vr(76+2*p,2)}, v[182:183], {vr(72+2*p,2)} op_sel_hi:[1,0,1]")
            for p in range(2):
                P(f"v_pk_mul_f32 {vr(72+2*p,2)}, {vr(72+2*p,2)}, v[182:183] op_sel:[0,1] op_sel_hi:[1,1]")

        CS = self.gemm_group(P, False, 1, 128, st)
        self.stamp(P, "gemm_k")
        for v in (80, 81):
            self.half_sum(P, v, 85)
            P(f"v_mov_b32 v85, v{v}")
            P(f"v_permlane16_swap_b32 v{v}, v85")
            P(f"v_add_f32 v{v}, v{v}, v85")
        self.ln_params(P, 80, 81, 182, 512, 85)
        halo_fold(P)
        P("v_cvt_pk_bf16_f32 v72, v72, v73")
        P("v_cvt_pk_bf16_f32 v73, v74, v75")
        hk = [P.LG("ds_write_b64 v180, v[72:73]")]
        self.fold(P, 128, 8, CS)
        for p in range(16):
            P(f"v_cvt_pk_bf16_f32 v{128+p}, v{128+2*p}, v{129+2*p}")
        hk += [P.LG(f"ds_write_b64 v178, {vr(128+2*q,2)} offset:{(q>>2)*64 + (q&3)*16}") for q in range(8)]
        CS = self.gemm_group(P, False, 2, 96, st)
        self.stamp(P, "gemm_v")
        halo_fold(P)
        hv = [P.LG("ds_write_b128 v181, v[72:75]")]
        self.fold(P, 96, 8, CS)
        hv += [P.LG(f"ds_write_b128 v179, {vr(96+4*q)} offset:{(q>>2)*128 + (q&3)*32}") for q in range(8)]
        P("v_and_b32 v2, 31, v1")
        P(f"s_lshl_b32 s{sT0}, s{sRB}, 2")
        P(f"s_add_u32 s{sT0}, s{sT0}, s{sWAVE}")
        P(f"s_lshl_b32 s{sT1}, s{sT0}, 5")
        P(f"v_add_u32 v2, s{sT1}, v2")
        for w in range(1, 8):
            P(f"v_cmp_le_u32 s[{64+2*w}:{65+2*w}], {2*w}, v2")
        P(f"v_mov_b32 v184, {f2u(-4e9)}")
        P(f"v_mov_b32 v185, {f2u(0.25*LOG2E)}")
        P(f"s_lshr_b32 s{sT1}, s{sT0}, 1")
        P(f"s_lshl_b32 s{sT1}, s{sT1}, 16")
        P(f"s_and_b32 s{sT2}, s{sWAVE}, 1")
        P(f"s_lshl_b32 s{sT2}, s{sT2}, 10")
        P(f"s_add_u32 s{sT1}, s{sT1}, s{sT2}")
        P(f"s_lshl_b32 s{sT2}, s{sST}, 13")
        P(f"s_add_u32 s{sT1}, s{sT1}, s{sT2}")
        P(f"s_add_u32 s{sK}, s{sT1}, {WS_O}")
        P("v_and_b32 v2, 31, v1")
        P("v_lshlrev_b32 v186, 4, v2")
        P("v_lshrrev_b32 v3, 5, v1")
        P("v_lshl_add_u32 v186, v3, 11, v186")
        P.W(hk, hv)
        P("s_barrier")
        self.stamp(P, "kv_ready")
        ho = []
        for cb in range(2):
            Lg = 128
            KT = 32
            hs = []
            for w in range(8):
                for e in range(2):
                    hs.append(P.LG(f"ds_read_b128 {vr(KT + 8*w + 4*e)}, v176 offset:{(14 - 2*w) * 144 + cb * 64 + 16*e}"))
                if w == 3 or w == 7:
                    for ww in range(w - 3, w + 1):
                        P.W(hs[2*ww+1])
                        for i in range(8):
                            q = 160 + 8*cb + QD[i]
                            if i == 0:
                                P(f"v_dot2_f32_bf16 v{Lg+ww}, v{q}, v{KT+8*ww+i}, 0")
                            elif i == 1:
                                P(f"v_dot2_f32_bf16 v{Lg+ww}, v{q}, v{KT+8*ww+i}, v{Lg+ww}")
                            else:
                                P(f"v_dot2_f32_bf16 v{Lg+ww}, v{q}, v{KT+8*ww+i}, v{Lg+ww}")
            def vread(w):
                return [P.LG(f"ds_read_b128 {vr(KT + 16*(w&3) + 4*e)}, v177 offset:{(14 - 2*w) * 272 + cb * 128 + 16*e}") for e in range(4)]
            hvr = {w: vread(w) for w in range(2)}
            for w in range(1, 8):
                P(f"v_cndmask_b32 v{Lg+w}, v184, v{Lg+w}, s[{64+2*w}:{65+2*w}]")
            P(f"v_max3_f32 v136, v{Lg}, v{Lg+1}, v{Lg+2}")
            P(f"v_max3_f32 v137, v{Lg+3}, v{Lg+4}, v{Lg+5}")
            P(f"v_max3_f32 v136, v136, v{Lg+6}, v{Lg+7}")
            P("v_max_f32 v136, v136, v137")
            P("v_mul_f32 v136, v136, v185")
            for w in range(8):
                P(f"v_fma_f32 v{Lg+w}, v{Lg+w}, v185, -v136")
            for w in range(8):
                P(f"v_exp_f32 v{Lg+w}, v{Lg+w}")
            P(f"v_pk_add_f32 v[136:137], {vr(Lg,2)}, {vr(Lg+2,2)}")
            P(f"v_pk_add_f32 v[138:139], {vr(Lg+4,2)}, {vr(Lg+6,2)}")
            P("v_pk_add_f32 v[136:137], v[136:137], v[138:139]")
            P("v_add_f32 v136, v136, v137")
            P("v_rcp_f32 v136, v136")
            O = 140
            for w in range(8):
                if w + 2 < 8:
                    hvr[w + 2] = vread(w + 2)
                P.W(hvr[w])
                sel = "op_sel:[0,1,0] op_sel_hi:[1,1,1]" if w & 1 else "op_sel_hi:[1,0,1]"
                for p in range(8):
                    src = vr(KT + 16*(w&3) + 2*p, 2)
                    if w == 0:
                        P(f"v_pk_mul_f32 {vr(O+2*p,2)}, {src}, {vr(Lg,2)} op_sel_hi:[1,0]")
                    else:
                        P(f"v_pk_fma_f32 {vr(O+2*p,2)}, {src}, {vr(Lg + (w & ~1),2)}, {vr(O+2*p,2)} {sel}")
            for p in range(8):
                P(f"v_pk_mul_f32 {vr(O+2*p,2)}, {vr(O+2*p,2)}, v[136:137] op_sel_hi:[1,0]")
            D = 96 + 8 * cb
            for p in range(8):
                P(f"v_cvt_pk_bf16_f32 v{D+p}, v{O+2*p}, v{O+2*p+1}")
            if cb:
                P(f"s_add_u32 s{sK}, s{sK}, 4096")
            ho += self.dual_store(P, [f"buffer_store_dwordx4 {vr(D+4*e)}, v186, {srd(SWS)}, s{sK} offen offset:{512*e}" for e in range(2)])
        self.stamp(P, "attn")
        P(f"s_lshl_b32 s{sT0}, s{sRB}, 2")
        P(f"s_add_u32 s{sT0}, s{sT0}, s{sWAVE}")
        P(f"s_lshr_b32 s63, s{sT0}, 1")
        P(f"s_lshl_b32 s63, s63, 7")
        P(f"s_and_b32 s{sT0}, s{sWAVE}, 1")
        P(f"s_lshl_b32 s{sT1}, s{sST}, 1")
        P(f"s_add_u32 s{sT0}, s{sT0}, s{sT1}")
        P(f"s_lshl_b32 s{sT0}, s{sT0}, 2")
        P(f"s_add_u32 s63, s63, s{sT0}")
        P(f"s_add_u32 s63, s63, {WS_FO}")
        self.wsp_simple(P)
        self.stamp(P, "wsp")
        self.phase23(P, ho, st["hn"])

    def flag_store(self, P, sreg):
        P(f"v_mov_b32 v2, s{sNONCE}")
        P("v_mov_b32 v3, 0")
        P("s_mov_b64 exec, 1")
        self.dual_store(P, [f"buffer_store_dword v2, v3, {srd(SWS)}, s{sreg} offen"])
        P("s_mov_b64 exec, -1")

    def phase23(self, P, hlate, hn):
        PW = 38912
        RD = 32
        def ring(e):
            q = e % RD
            return ar(64 + 4*q) if q < 16 else vr(32 + 4*(q - 16))
        P.W(hlate, hn)
        self.flag_store(P, 63)
        self.nonce_finish(P)
        P("s_barrier")
        P("v_and_b32 v8, 15, v1")
        P("v_lshlrev_b32 v8, 7, v8")
        P(f"s_lshl_b32 s{sT0}, s{sNT}, 2")
        P(f"s_add_u32 s{sT0}, s{sT0}, s{sWAVE}")
        P(f"s_lshl_b32 s{sT0}, s{sT0}, 11")
        P(f"s_add_u32 s{sT0}, s{sT0}, {WS_FZ2N}")
        P(f"v_add_u32 v8, s{sT0}, v8")
        ld = [f"buffer_load_dword v9, v8, {srd(SWS)}, 0 offen sc1"]
        hp = P.VM(ld[0])
        P("v_lshlrev_b32 v28, 4, v1")
        P("v_and_b32 v2, 31, v1")
        P(f"s_cmp_eq_u32 s{sNT}, 7")
        P(f"s_cselect_b32 s{sT0}, 15, 63")
        P(f"s_cselect_b32 s{sT1}, {OOB}, 0")
        P(f"v_cmp_lt_u32 vcc, s{sT0}, v2")
        P(f"v_mov_b32 v3, {OOB}")
        P("v_cndmask_b32 v10, v28, v3, vcc")
        P(f"v_or_b32 v11, s{sT1}, v28")
        P(f"s_mul_i32 s{sK}, s{sNT}, 393216")
        P(f"s_mul_i32 s{sT0}, s{sWAVE}, 98304")
        P(f"s_add_u32 s{sK}, s{sK}, s{sT0}")
        P(f"s_add_u32 s{sK}, s{sK}, {WS_Z2N}")
        P(f"s_mul_i32 s{sLW}, s{sWAVE}, {PW}")
        self.tr128_addrs(P, 16, 0, sLW)
        P("v_lshrrev_b32 v2, 3, v1")
        P("v_lshlrev_b32 v2, 10, v2")
        P("v_bfe_u32 v3, v1, 4, 1")
        P("v_lshlrev_b32 v3, 2, v3")
        P("v_and_b32 v18, 7, v1")
        P("v_xor_b32 v3, v3, v18")
        P("v_lshl_add_u32 v18, v3, 4, v2")
        P(f"s_lshl_b32 s{sWOFF}, s{sNT}, 7")
        P(f"s_lshl_b32 s{sT0}, s{sWAVE}, 17")
        P(f"s_add_u32 s{sXOFF}, s{sWOFF}, s{sT0}")
        P(f"s_mul_i32 s{sT0}, s{sWAVE}, {176*1024}")
        P(f"s_add_u32 s{sWOFF}, s{sWOFF}, s{sT0}")
        P.W(hp)
        self.spin(P, ld, lambda Q: Q(f"v_cmp_ne_u32 vcc, s{sNONCE}, v9"), 3)
        self.stamp(P, "z2n_ok")

        hb = {}
        def issue_b(e):
            if e < 96:
                j, cb = divmod(e, 3)
                if cb == 0 and j:
                    P(f"s_add_u32 s{sK}, s{sK}, 3072")
                hb[e] = P.VM(f"buffer_load_dwordx4 {ring(e)}, v{10 if cb == 0 else 11}, {srd(SWS)}, s{sK} offen offset:{1024*cb} sc1")
        hw3 = []
        def w3_dma(i):
            if i < 16:
                P(f"s_add_u32 m0, s{sLW}, {i * 1024}")
                P(f"s_add_u32 s{sT0}, s{sXOFF}, {i * 8192}")
                hw3.append(P.VM(f"buffer_load_dwordx4 v18, {srd(SWO)}, s{sT0} offen lds"))
            else:
                P(f"s_add_u32 m0, s{sLW}, {i * 1024}")
                P(f"s_add_u32 s{sT0}, s{sWOFF}, {(i - 16) * 8192}")
                hw3.append(P.VM(f"buffer_load_dwordx4 v18, {srd(SWOUT)}, s{sT0} offen lds"))
        def w3reg(i, nb):
            r = 8 * i + 4 * nb
            return ("a", 128 + r) if r < 128 else ("v", 192 + r - 128)
        hw3r = []
        def w3_read(i, nb, m):
            k, b = w3reg(i, nb)
            hw3r.append(P.LG(f"ds_read_b64_tr_b16 {k}[{b+2*m}:{b+2*m+1}], v{16+nb} offset:{(16*i + 4*m) * 128}"))
        for e in range(RD):
            issue_b(e)
        dma_list = list(range(38))
        rd_list = [(i, nb, m) for i in range(19) for nb in range(2) for m in range(2)]
        ACC = 96
        hmisc = {}
        for j in range(32):
            P.C(f"phase 2 step {j}")
            for fb in range(3):
                e = 3 * j + fb
                P.W(hb[e])
                for tb in range(2):
                    a = vr(ACC + (fb * 2 + tb) * 16, 16)
                    P(f"v_mfma_f32_32x32x16_bf16 {a}, {ring(e)}, {self.wsp_reg(j, tb)}, {'0' if j == 0 else a}")
                issue_b(e + RD)
                if j >= 1 and dma_list and fb != 1:
                    w3_dma(dma_list.pop(0))
                if j >= 22 and rd_list:
                    for _ in range(3):
                        if rd_list:
                            i, nb, m = rd_list[0]
                            k, b = w3reg(i, nb)
                            if k == "v" and j < 25:
                                break
                            P.W(hw3[2 * i + 1])
                            w3_read(*rd_list.pop(0))
            if j == 20:
                P("v_and_b32 v2, 7, v1")
                P(f"s_lshl_b32 s{sT0}, s{sMT}, 1")
                P(f"s_and_b32 s{sT1}, s{sWAVE}, 1")
                P(f"s_add_u32 s{sT0}, s{sT0}, s{sT1}")
                P(f"s_lshl_b32 s{sT2}, s{sT0}, 7")
                P(f"s_add_u32 s{sT2}, s{sT2}, {WS_FZ1}")
                P(f"v_lshl_add_u32 v8, v2, 2, s{sT2}")
                P("v_and_b32 v2, 15, v1")
                P(f"s_lshl_b32 s{sT2}, s{sMT}, 7")
                P(f"s_add_u32 s{sT2}, s{sT2}, {WS_FO}")
                P(f"v_lshl_add_u32 v3, v2, 2, s{sT2}")
                P("v_cmp_gt_u32 vcc, 32, v1")
                P("v_cndmask_b32 v8, v3, v8, vcc")
                hmisc["f"] = P.VM(ld[0])
                P(f"s_mul_i32 s{sT3}, s{sT0}, {48*1024}")
                P(f"s_mul_i32 s{sT2}, s{sNT}, 6")
                P(f"s_add_u32 s{sT2}, s{sT2}, 1")
                P(f"s_cmp_eq_u32 s{sNT}, 7")
                P(f"s_cselect_b32 s{sT2}, 0, s{sT2}")
                P(f"s_lshr_b32 s{sT1}, s{sWAVE}, 1")
                P(f"s_add_u32 s64, s{sT2}, s{sT1}")
                P(f"s_lshl_b32 s{sT2}, s64, 10")
                P(f"s_add_u32 s{sT3}, s{sT3}, s{sT2}")
                P(f"s_add_u32 s65, s{sT3}, {WS_Z1}")
                P("v_and_b32 v2, 31, v1")
                P(f"s_lshl_b32 s{sT0}, s{sT0}, 5")
                P(f"v_add_lshl_u32 v2, v2, s{sT0}, 1")
                hmisc["b"] = P.VM(f"buffer_load_ushort v29, v2, {srd(SBSP)}, 0 offen")
                P("v_lshrrev_b32 v2, 3, v0")
                P("v_and_b32 v3, 7, v0")
                P("v_lshlrev_b32 v30, 10, v2")
                P("v_lshl_add_u32 v30, v3, 4, v30")
                P(f"s_lshl_b32 s{sT0}, s{sMT}, 16")
                P(f"s_lshl_b32 s{sT1}, s{sNT}, 7")
                P(f"s_add_u32 s{sT0}, s{sT0}, s{sT1}")
                P(f"v_add_u32 v30, s{sT0}, v30")
                P("v_add_u32 v31, 32768, v30")
            if j == 24:
                P.W(hmisc["f"])
                self.spin(P, ld, lambda Q: Q(f"v_cmp_ne_u32 vcc, s{sNONCE}, v9"), 4)
            if j == 25:
                hmisc["z1"] = []
                P(f"s_add_u32 s{sT0}, s65, 4096")
                for fb in range(3):
                    hmisc["z1"].append(P.VM(f"buffer_load_dwordx4 {vr(216+4*fb)}, v28, {srd(SWS)}, s{65 if fb < 2 else sT0} offen offset:{2048*(fb&1)} sc1"))
                hmisc["x"] = [P.VM(f"buffer_load_dwordx4 {vr(228+4*i)}, v{30+i}, {srd(SX)}, 0 offen") for i in range(2)]
                P(f"s_lshl_b32 s{sT0}, s{sMT}, 2")
                P(f"s_add_u32 s{sT0}, s{sT0}, s{sWAVE}")
                P(f"s_lshl_b32 s{sT0}, s{sT0}, 14")
                P(f"s_add_u32 s63, s{sT0}, {WS_O}")
            if j >= 26:
                pass
        assert not dma_list
        while rd_list:
            i, nb, m = rd_list[0]
            P.W(hw3[2 * i + 1])
            w3_read(*rd_list.pop(0))
        ho = []
        for i in range(16):
            if i and i % 4 == 0:
                P("s_add_u32 s63, s63, 4096")
            ho.append(P.VM(f"buffer_load_dwordx4 {ring(96 + i)}, v28, {srd(SWS)}, s63 offen offset:{1024*(i%4)} sc1"))
        self.stamp(P, "p2_mfma")
        P(f"v_add_u32 v2, s{sLW}, v28")
        P.W(hw3r)
        hs = [P.LG(f"ds_write_b128 v2, {vr(ACC + 4*i)} offset:{1024*i}") for i in range(24)]
        P(f"s_and_b32 s{sT0}, s{sWAVE}, 1")
        P(f"s_lshl_b32 s{sT0}, s{sT0}, 12")
        P(f"s_lshr_b32 s{sT1}, s{sWAVE}, 1")
        P(f"s_lshl_b32 s{sT1}, s{sT1}, 11")
        P(f"s_add_u32 s{sT0}, s{sT0}, s{sT1}")
        P(f"v_add_u32 v2, s{sT0}, v28")
        P(f"v_add_u32 v3, {2*PW}, v2")
        P.W(hs)
        P("s_barrier")
        G = 96
        T = 32
        def rd2(s, dst):
            return [P.LG(f"ds_read_b128 {vr(dst + 8*fb + 4*e)}, v{2 + (s >> 1)} offset:{(s & 1) * PW + fb * 8192 + e * 1024}") for fb in range(3) for e in range(2)]
        def add2(src):
            for p in range(12):
                P(f"v_pk_add_f32 {vr(G+2*p,2)}, {vr(G+2*p,2)}, {vr(src+2*p,2)}")
        h0 = rd2(0, G)
        h1 = rd2(1, T)
        P.W(h0)
        h2 = rd2(2, T + 24)
        P.W(h1)
        add2(T)
        h3 = rd2(3, T)
        P.W(h2)
        add2(T + 24)
        P.W(h3)
        add2(T)
        P.W(hmisc["b"], hmisc["z1"])
        P("v_lshlrev_b32 v8, 16, v29")
        for p in range(12):
            P(f"v_pk_add_f32 {vr(G+2*p,2)}, {vr(G+2*p,2)}, v[8:9] op_sel_hi:[1,0]")
        for p in range(12):
            P(f"v_lshlrev_b32 v{T+2*p}, 16, v{216+p}")
            P(f"v_and_b32 v{T+2*p+1}, 0xffff0000, v{216+p}")
        for p in range(12):
            P(f"v_pk_mul_f32 {vr(G+2*p,2)}, {vr(G+2*p,2)}, {vr(T+2*p,2)}")
        U = 120
        for p in range(12):
            P(f"v_cvt_pk_bf16_f32 v{U+p}, v{G+2*p}, v{G+2*p+1}")
        for fb in range(3):
            P(f"v_permlane32_swap_b32 v{U+4*fb}, v{U+4*fb+2}")
            P(f"v_permlane32_swap_b32 v{U+4*fb+1}, v{U+4*fb+3}")
        P(f"s_mul_i32 s{sT0}, s{sMT}, 48")
        P(f"s_add_u32 s{sT0}, s{sT0}, s64")
        P(f"s_lshl_b32 s{sT0}, s{sT0}, 1")
        P(f"s_and_b32 s{sT1}, s{sWAVE}, 1")
        P(f"s_add_u32 s{sT0}, s{sT0}, s{sT1}")
        P(f"s_lshl_b32 s{sT0}, s{sT0}, 10")
        P(f"s_add_u32 s{sT0}, s{sT0}, {WS_U}")
        P(f"s_add_u32 s{sT1}, s{sT0}, 4096")
        P(f"s_add_u32 s{sT2}, s{sT0}, 8192")
        P(f"s_cmp_eq_u32 s{sNT}, 7")
        P(f"s_cselect_b32 s{sT1}, 0x7fff0000, s{sT1}")
        P(f"s_cselect_b32 s{sT2}, 0x7fff0000, s{sT2}")
        P(f"s_cselect_b32 s{sT3}, s{sWAVE}, 0")
        P(f"s_cmp_ge_u32 s{sT3}, 2")
        P(f"s_cselect_b32 s{sT0}, 0x7fff0000, s{sT0}")
        hu = self.dual_store(P, [f"buffer_store_dwordx4 {vr(U+4*fb)}, v28, {srd(SWS)}, s{sT0+fb} offen" for fb in range(3)])
        self.stamp(P, "u_st")
        P(f"s_lshl_b32 s{sT3}, s{sMT}, 7")
        P(f"s_add_u32 s{sT3}, s{sT3}, {WS_FU}")
        P("v_and_b32 v8, 31, v1")
        P(f"v_lshl_add_u32 v8, v8, 2, s{sT3}")
        P(f"s_lshl_b32 s66, s{sNT}, 2")
        P(f"s_add_u32 s66, s66, s{sWAVE}")
        P("s_lshl_b32 s66, s66, 2")
        P(f"s_add_u32 s66, s66, s{sT3}")
        P.W(hu)
        self.flag_store(P, 66)
        A3 = 128
        def w3r(i, nb):
            k, b = w3reg(i, nb)
            return f"{k}[{b}:{b+3}]"
        for i in range(8):
            P.W(ho[2*i+1])
            for nb in range(2):
                for tb in range(2):
                    a = vr(A3 + (nb*2+tb)*16, 16)
                    P(f"v_mfma_f32_32x32x16_bf16 {a}, {w3r(i, nb)}, {ring(96 + 2*i + tb)}, {'0' if i == 0 else a}")
            if i == 3:
                hp = P.VM(ld[0])
        P(f"s_mul_i32 s{sT0}, s{sMT}, 48")
        P(f"s_mul_i32 s{sT1}, s{sWAVE}, 11")
        P(f"s_add_u32 s{sT0}, s{sT0}, s{sT1}")
        P(f"s_lshl_b32 s{sT0}, s{sT0}, 11")
        P(f"s_add_u32 s{sK}, s{sT0}, {WS_U}")
        P.W(hp)
        self.spin(P, ld, lambda Q: Q(f"v_cmp_ne_u32 vcc, s{sNONCE}, v9"), 5)
        self.stamp(P, "u_ok")
        def ureg(e):
            return ar(4*e) if e < 16 else vr(32 + 4*(e - 16))
        hul = []
        for e in range(22):
            if e and e % 4 == 0:
                P(f"s_add_u32 s{sK}, s{sK}, 4096")
            if e == 20:
                P(f"s_cmp_eq_u32 s{sWAVE}, 3")
                P(f"s_cselect_b32 s{sK}, 0x7fff0000, s{sK}")
            hul.append(P.VM(f"buffer_load_dwordx4 {ureg(e)}, v28, {srd(SWS)}, s{sK} offen offset:{1024*(e%4)} sc1"))
        P("v_and_b32 v2, 31, v1")
        P("v_mul_u32_u24 v2, 272, v2")
        P("v_lshrrev_b32 v3, 5, v1")
        P("v_lshl_add_u32 v2, v3, 4, v2")
        P(f"v_add_u32 v2, s{sLW}, v2")
        P("v_lshrrev_b32 v3, 3, v0")
        P("v_mul_u32_u24 v3, 272, v3")
        P("v_and_b32 v8, 7, v0")
        P("v_lshl_add_u32 v3, v8, 5, v3")
        P(f"v_add_u32 v8, {2*PW}, v3")
        for i in range(11):
            P.W(hul[2*i+1])
            for nb in range(2):
                for tb in range(2):
                    a = vr(A3 + (nb*2+tb)*16, 16)
                    P(f"v_mfma_f32_32x32x16_bf16 {a}, {w3r(8+i, nb)}, {ureg(2*i + tb)}, {a}")
        self.stamp(P, "p3_mfma")
        P("s_barrier")
        hs = []
        for nb in range(2):
            for tb in range(2):
                for q in range(4):
                    hs.append(P.LG(f"ds_write_b128 v2, {vr(A3 + (nb*2+tb)*16 + 4*q)} offset:{tb*32*272 + (32*nb + 8*q)*4}"))
        P.W(hs)
        P("s_barrier")
        F = 96
        hs = {}
        def rd3(jj, s):
            hs[jj, s] = [P.LG(f"ds_read_b128 {vr(32 + jj*32 + s*8 + 4*e)}, v{3 if s < 2 else 8} offset:{(s&1)*PW + jj*32*272 + 16*e}") for e in range(2)]
        for s in range(4):
            rd3(0, s)
        P.W(hmisc["x"])
        for i in range(8):
            P(f"v_lshlrev_b32 v{F+2*i}, 16, v{228+i}")
            P(f"v_and_b32 v{F+2*i+1}, 0xffff0000, v{228+i}")
        for jj in range(2):
            for s in range(4):
                P.W(hs[jj, s])
                if jj == 0:
                    rd3(1, s)
                for p in range(4):
                    P(f"v_pk_add_f32 {vr(F + 8*jj + 2*p,2)}, {vr(F + 8*jj + 2*p,2)}, {vr(32 + jj*32 + s*8 + 2*p,2)}")
            for p in range(4):
                P(f"v_cvt_pk_bf16_f32 v{112 + 4*jj + p}, v{F + 8*jj + 2*p}, v{F + 8*jj + 2*p + 1}")
            P.VM(f"buffer_store_dwordx4 {vr(112 + 4*jj)}, v{30+jj}, {srd(SOUT)}, 0 offen")
        if self.o.stamps:
            P.W0(vm=True)
            self.stamp(P, "end")
            for i in range(16):
                P(f"v_mov_b32 v{32+i}, s{sSTAMP+i}")
            P(f"s_lshl_b32 s{sT0}, s2, 2")
            P(f"s_add_u32 s{sT0}, s{sT0}, s{sWAVE}")
            P(f"s_lshl_b32 s{sT0}, s{sT0}, 6")
            P(f"s_add_u32 s{sT0}, s{sT0}, {WS_STAMP}")
            P("v_mov_b32 v2, 0")
            P("s_mov_b64 exec, 1")
            for i in range(4):
                P(f"buffer_store_dwordx4 {vr(32+4*i)}, v2, {srd(SWS)}, s{sT0} offen offset:{16*i}")
        P("s_endpgm")

    def build(self):
        self.fail_codes = set()
        lines = []
        P0 = Prog("pro")
        self.nstamp_role, self.stamp_names = 0, []
        if self.o.stamps:
            self.stamp(P0, "start")
        self.prologue(P0)
        P0(f"s_cmp_ge_u32 s{sJ}, 16")
        P0("s_cbranch_scc1 .Lrole_a")
        n0 = self.nstamp_role
        names = {}
        bodies = []
        for role, fn in (("z", self.role_z), ("a", self.role_a)):
            P = Prog(role)
            P.items = list(P0.items)
            skip = len(P0.items)
            self.mk = lambda r, pair, n, P=P: (P(f"s_mov_b32 s{r}, s{pair}"), P(f"s_mov_b32 s{r+1}, s{pair+1}"), P(f"s_mov_b32 s{r+2}, {n}"), P(f"s_mov_b32 s{r+3}, 0x20000"))
            self.nstamp_role = n0
            self.stamp_names = self.stamp_names[:n0]
            P.L(f".Lrole_{role}")
            fn(P)
            txt = P.finalize()
            names[role] = list(self.stamp_names)
            print(f"role {role}: max outstanding vm {P.maxvm}, lg {P.maxlg}, nops {P.nnops}, lines {len(txt)}", file=sys.stderr)
            i = txt.index(f".Lrole_{role}:")
            if role == "z":
                bodies += txt
            else:
                bodies += txt[i:]
        for T in self.tail:
            bodies += T.finalize()
        for c in sorted(self.fail_codes):
            bodies += [f".Lfail_{c}:", f"    v_mov_b32 v2, {c}", f"    v_mov_b32 v3, {4*(8+c)}", "    s_mov_b64 exec, 1",
                       f"    buffer_store_dword v2, v3, {srd(SDBG)}, 0 offen", "    s_endpgm"]
        bodies += [".Lend:", "    s_endpgm", ".Lcode_end:"]
        bodies = [l for l in bodies if not l.strip().startswith("; counted")]
        K = NAME + "_kernel"
        s = HEADER_COMMENT
        s += "; @launch grid=(256,1,1) block=(256,1,1) lds=163840\n"
        s += '.amdgcn_target "amdgcn-amd-amdhsa--gfx950"\n.text\n'
        s += f".globl {K}\n.p2align 8\n.type {K},@function\n{K}:\n"
        s += f".set CODE_PIECES, (.Lcode_end - {K}) / 4096\n"
        s += "\n".join(bodies) + "\n"
        s += f""".section .rodata,"a"
.p2align 6
.amdhsa_kernel {K}
  .amdhsa_next_free_vgpr 512
  .amdhsa_next_free_sgpr 102
  .amdhsa_accum_offset 256
  .amdhsa_group_segment_fixed_size 0
  .amdhsa_kernarg_size 88
  .amdhsa_user_sgpr_count 2
  .amdhsa_user_sgpr_kernarg_segment_ptr 1
  .amdhsa_system_sgpr_workgroup_id_x 1
.end_amdhsa_kernel
"""
        self.names = names
        return s

if __name__ == "__main__":
    ap = argparse.ArgumentParser()
    ap.add_argument("out")
    ap.add_argument("--stamps", action="store_true")
    ap.add_argument("--force_global", action="store_true")
    o = ap.parse_args()
    g = Gen(o)
    s = g.build()
    open(o.out, "w").write(s)
    if o.stamps:
        import json
        json.dump(g.names, open(o.out + ".stamps.json", "w"))
```

```python
import sys, struct, argparse
from asmlib import NAME, HEADER_COMMENT, ARG, NBYTES
from prog import Prog

def f2u(x):
    return struct.unpack("<I", struct.pack("<f", x))[0]

LOG2E = 1.4426950408889634
KB = 1024
MB = 1 << 20
WS_NONCE = 0
WS_XCC = 4096
WS_FZ2N = 64 * KB
WS_FZ1 = 128 * KB
WS_FO = 192 * KB
WS_FU = 256 * KB
WS_STATS = 512 * KB
WS_Z2N = 1 * MB
WS_Z1 = 4 * MB
WS_O = 7 * MB
WS_U = 9 * MB
WS_STAMP = 12 * MB
WS_SIZE = 13 * MB
OOB = 0x80000000
SPIN_LIMIT = 200000

sWAVE, sG, sJ, sRB, sST, sMT, sNT, sNONCE, sLOCAL, sXCC = 4, 5, 6, 7, 8, 9, 10, 11, 12, 13
SX, SW, SWSP, SWS, SWO, SWOUT, SOUT, SBSP, SDBG = 16, 20, 24, 28, 32, 36, 40, 44, 48
sXOFF, sWOFF, sLX, sLW, sONES, sSPIN = 52, 53, 54, 55, 56, 57
sT0, sT1, sT2, sT3 = 58, 59, 60, 61
sK = 62
sSTAMP = 86

def srd(r):
    return f"s[{r}:{r+3}]"

def vr(b, n=4):
    return f"v[{b}:{b+n-1}]"

def ar(b, n=4):
    return f"a[{b}:{b+n-1}]"

class Gen:
    def __init__(self, opts):
        self.o = opts
        self.tail = []
        self.nstamp = 0

    def stamp(self, P, name):
        if not self.o.stamps:
            return
        i = self.nstamp_role
        self.nstamp_role += 1
        assert i < 15, "too many stamps"
        self.stamp_names.append(name)
        P("s_memrealtime s[14:15]")
        P.W0(lg=True)
        P(f"s_mov_b32 s{sSTAMP+i}, s14")
        if name in ("start", "end"):
            P("s_memtime s[14:15]")
            P.W0(lg=True)
            if name == "start":
                P(f"s_mov_b32 s{sSTAMP+15}, s14")
            else:
                P(f"s_sub_u32 s{sSTAMP+15}, s14, s{sSTAMP+15}")

    def spin(self, P, loads, check, code):
        slow, back = P.lab("slow"), P.lab("back")
        check(P)
        P(f"s_cbranch_vccnz {slow}")
        P.L(back)
        T = Prog(P.name + "t" + str(len(self.tail)))
        T.L(slow)
        T(f"s_mov_b32 s{sSPIN}, 0")
        loop = T.lab("loop")
        T.L(loop)
        T(f"s_add_u32 s{sSPIN}, s{sSPIN}, 1")
        T(f"s_cmp_gt_u32 s{sSPIN}, {SPIN_LIMIT}")
        T(f"s_cbranch_scc1 .Lfail_{code}")
        T("s_sleep 1")
        for l in loads:
            T.VM(l)
        T.W0(vm=True)
        check(T)
        T(f"s_cbranch_vccnz {loop}")
        T("s_nop 4")
        T(f"s_branch {back}")
        self.tail.append(T)
        self.fail_codes.add(code)

    def dual_store(self, P, stores):
        alt, back = P.lab("sc1"), P.lab("back")
        P(f"s_cmp_eq_u32 s{sLOCAL}, 0")
        P(f"s_cbranch_scc1 {alt}")
        hs = [P.VM(s) for s in stores]
        P.L(back)
        T = Prog(P.name + "t" + str(len(self.tail)))
        T.L(alt)
        for s in stores:
            T(s + " sc1")
        T(f"s_branch {back}")
        self.tail.append(T)
        return hs

    def half_sum(self, P, v, t):
        P(f"v_mov_b32 v{t}, v{v}")
        P(f"v_permlane32_swap_b32 v{v}, v{t}")
        P(f"v_add_f32 v{v}, v{v}, v{t}")

    def prologue(self, P):
        P("s_cmp_ge_u32 s2, 256")
        P("s_cbranch_scc1 .Lend")
        P("s_load_dwordx16 s[64:79], s[0:1], 0")
        P("s_load_dwordx4 s[80:83], s[0:1], 64")
        P("s_load_dwordx2 s[84:85], s[0:1], 80")
        P("s_getpc_b64 s[14:15]")
        P(f"s_lshr_b32 s{sJ}, s2, 3")
        P(f"s_and_b32 s{sG}, s2, 7")
        P(f"s_and_b32 s{sT0}, s{sJ}, 15")
        P(f"s_min_u32 s{sT0}, s{sT0}, CODE_PIECES-1")
        P(f"s_lshl_b32 s{sT0}, s{sT0}, 12")
        P("v_lshlrev_b32 v2, 4, v0")
        P(f"v_add_u32 v2, s{sT0}, v2")
        P.VM("global_load_dwordx4 v[92:95], v2, s[14:15]")
        P("v_and_b32 v1, 63, v0")
        P("v_lshrrev_b32 v2, 6, v0")
        P(f"s_getreg_b32 s{sXCC}, hwreg(HW_REG_XCC_ID, 0, 4)")
        P(f"v_readfirstlane_b32 s{sWAVE}, v2")
        P(f"s_and_b32 s{sST}, s{sJ}, 7")
        P(f"s_bfe_u32 s{sRB}, s{sJ}, 0x10003")
        P(f"s_lshl_b32 s{sT0}, s{sG}, 1")
        P(f"s_add_u32 s{sRB}, s{sRB}, s{sT0}")
        P(f"s_and_b32 s{sMT}, s{sJ}, 3")
        P(f"s_lshl_b32 s{sT0}, s{sG}, 2")
        P(f"s_add_u32 s{sMT}, s{sMT}, s{sT0}")
        P(f"s_lshr_b32 s{sNT}, s{sJ}, 2")
        P(f"s_mov_b32 s{sONES}, 0x3f803f80")
        P(f"s_lshl_b32 s{sLX}, s{sWAVE}, 14")
        P(f"s_lshl_b32 s{sXOFF}, s{sRB}, 2")
        P(f"s_add_u32 s{sXOFF}, s{sXOFF}, s{sWAVE}")
        P(f"s_lshl_b32 s{sXOFF}, s{sXOFF}, 15")
        P("v_lshrrev_b32 v2, 3, v1")
        P("v_lshlrev_b32 v2, 10, v2")
        P("v_lshrrev_b32 v3, 4, v1")
        P("v_and_b32 v11, 7, v1")
        P("v_xor_b32 v3, v3, v11")
        P("v_lshl_add_u32 v4, v3, 4, v2")
        P("v_xor_b32 v5, 64, v4")
        P(f"v_add_u32 v5, {8192-1024}, v5")
        P(f"v_add_u32 v6, {16384-2048}, v4")
        P(f"v_add_u32 v7, {16384-2048}, v5")
        P("v_and_b32 v2, 31, v1")
        P("v_lshlrev_b32 v3, 7, v2")
        P("v_bfe_u32 v2, v1, 1, 3")
        P("v_lshrrev_b32 v11, 5, v1")
        P("v_xor_b32 v2, v2, v11")
        P("v_lshl_add_u32 v12, v2, 4, v3")
        P(f"v_add_u32 v12, s{sLX}, v12")
        for jj in range(1, 4):
            P(f"v_xor_b32 v{12+jj}, {jj<<5}, v12")
        for i in range(4):
            P(f"v_mov_b32 v{20+i}, s{sONES}")
        P("v_mov_b32 v24, 0")
        P("v_mov_b32 v25, 0")
        P.W0(lg=True)
        def mk(r, pair, n):
            P(f"s_mov_b32 s{r}, s{pair}")
            P(f"s_mov_b32 s{r+1}, s{pair+1}")
            P(f"s_mov_b32 s{r+2}, {n}")
            P(f"s_mov_b32 s{r+3}, 0x20000")
        mk(SX, 64, NBYTES['x'])
        mk(SWS, 84, WS_SIZE)
        self.mk = mk

    def nonce_load(self, P):
        P("v_mov_b32 v3, 0")
        return P.VM(f"buffer_load_dword v30, v3, {srd(SWS)}, 0 offen sc1")

    def late_srds(self, P):
        mk = self.mk
        mk(SWSP, 74, NBYTES['w_sp'])
        mk(SWO, 68, NBYTES['wo'])
        mk(SWOUT, 78, NBYTES['w_out'])
        mk(SOUT, 80, NBYTES['out'])
        mk(SBSP, 76, NBYTES['b_sp'])
        mk(SDBG, 82, 256)

    def nonce_publish(self, P):
        skip = P.lab("nw0")
        P(f"s_cmp_lg_u32 s{sWAVE}, 0")
        P(f"s_cbranch_scc1 {skip}")
        P("s_mov_b64 exec, 1")
        P(f"s_lshl_b32 s{sT0}, s{sG}, 8")
        P(f"s_lshl_b32 s{sT1}, s{sJ}, 3")
        P(f"s_add_u32 s{sT0}, s{sT0}, s{sT1}")
        P(f"s_add_u32 s{sT0}, s{sT0}, {WS_XCC}")
        P(f"v_mov_b32 v2, s{sNONCE}")
        P(f"v_mov_b32 v3, s{sXCC}")
        P("v_mov_b32 v11, 0")
        P(f"buffer_store_dwordx2 v[2:3], v11, {srd(SWS)}, s{sT0} offen sc1")
        P("s_mov_b64 exec, -1")
        P.L(skip)
        return None

    def nonce_finish(self, P):
        skip = P.lab("nf")
        P(f"s_or_b32 s{sT0}, s2, s{sWAVE}")
        P(f"s_cmp_lg_u32 s{sT0}, 0")
        P(f"s_cbranch_scc1 {skip}")
        P("v_lshlrev_b32 v2, 4, v1")
        P(f"v_add_u32 v2, {WS_XCC}, v2")
        loads = [f"buffer_load_dwordx4 {vr(32+4*i)}, v2, {srd(SWS)}, 0 offen offset:{1024*i} sc1" for i in range(2)]
        for l in loads:
            P(l)
        P("s_waitcnt vmcnt(0)")
        def chk(Q):
            Q(f"v_xor_b32 v40, s{sNONCE}, v32")
            for r in (34, 36, 38):
                Q(f"v_xor_b32 v41, s{sNONCE}, v{r}")
                Q("v_or_b32 v40, v40, v41")
            Q("v_cmp_ne_u32 vcc, 0, v40")
        self.spin(P, loads, chk, 6)
        P(f"v_mov_b32 v2, s{sNONCE}")
        P("v_mov_b32 v3, 0")
        P("s_mov_b64 exec, 1")
        P(f"buffer_store_dword v2, v3, {srd(SWS)}, 0 offen sc1")
        P("s_mov_b64 exec, -1")
        P.L(skip)

    def xcc_loads(self):
        return [f"buffer_load_dwordx2 v[2:3], v11, {srd(SWS)}, 0 offen sc1"]

    def xcc_issue(self, P):
        P("v_and_b32 v11, 31, v1")
        P("v_lshlrev_b32 v11, 3, v11")
        P(f"s_lshl_b32 s{sT0}, s{sG}, 8")
        P(f"s_add_u32 s{sT0}, s{sT0}, {WS_XCC}")
        P(f"v_add_u32 v11, s{sT0}, v11")
        return P.VM(self.xcc_loads()[0])

    def xcc_check(self, P, h):
        P.W(h)
        self.spin(P, self.xcc_loads(), lambda Q: Q(f"v_cmp_ne_u32 vcc, s{sNONCE}, v2"), 1)
        P(f"v_cmp_ne_u32 vcc, s{sXCC}, v3")
        P("s_cmp_eq_u64 vcc, 0")
        P(f"s_cselect_b32 s{sLOCAL}, {0 if self.o.force_global else 1}, 0")

    def p1_setup(self, P, z):
        if z:
            self.mk(SW, 72, NBYTES['w_in'])
            self.NS, self.WCH, self.WROW, self.NCB = 5, 12288, 192, 3
            for p in range(3):
                P(f"v_add_u32 v2, {64*p}, v1")
                P(f"v_mul_u32_u24 v3, 5462, v2")
                P("v_lshrrev_b32 v3, 16, v3")
                P("v_mul_u32_u24 v11, 12, v3")
                P("v_sub_u32 v11, v2, v11")
                P("v_mul_u32_u24 v3, 2752, v3")
                P(f"v_lshl_add_u32 v{8+p}, v11, 4, v3")
                if p:
                    P(f"v_subrev_u32 v{8+p}, {1024*p}, v{8+p}")
                P(f"s_cmp_eq_u32 s{sST}, 7")
                P(f"s_cselect_b32 s{sT0}, 1, 15")
                P(f"v_cmp_lt_u32 vcc, s{sT0}, v11")
                P(f"v_mov_b32 v2, {OOB}")
                P(f"v_cndmask_b32 v{8+p}, v{8+p}, v2, vcc")
            P(f"s_mul_i32 s{sT0}, s{sST}, 192")
            P(f"s_add_u32 s{sT1}, s{sT0}, 1408")
            P(f"s_cmp_eq_u32 s{sST}, 7")
            P(f"s_cselect_b32 s{sT1}, 1376, s{sT1}")
            P(f"s_mul_i32 s{sT2}, s{sWAVE}, {16*2752}")
            P(f"s_add_u32 s{sWOFF}, s{sT1}, s{sT2}")
            P(f"s_add_u32 s63, s{sT0}, s{sT2}")
            P(f"s_mul_i32 s{sLW}, s{sWAVE}, 3072")
            P(f"s_add_u32 s{sLW}, s{sLW}, 65536")
            P("v_lshrrev_b32 v2, 4, v1")
            P("v_bfe_u32 v3, v1, 2, 2")
            P("v_and_b32 v11, 3, v1")
            P("v_lshlrev_b32 v11, 3, v11")
            P("v_lshrrev_b32 v16, 1, v2")
            P("v_lshl_add_u32 v16, v16, 3, v3")
            P("v_mul_u32_u24 v16, 192, v16")
            P("v_and_b32 v17, 1, v2")
            P("v_lshl_add_u32 v16, v17, 5, v16")
            P("v_add_u32 v16, v16, v11")
            P("v_add_u32 v16, 65536, v16")
            P("v_lshl_add_u32 v17, v2, 3, v3")
            P("v_mul_u32_u24 v17, 192, v17")
            P("v_add_u32 v17, v17, v11")
            P("v_add_u32 v17, 65536, v17")
            P(f"s_and_b32 s{sT0}, s{sWAVE}, 1")
            P(f"s_lshl_b32 s{sT0}, s{sT0}, 5")
            P(f"s_add_u32 s{sT0}, s{sT0}, 128")
            P(f"v_add_u32 v18, s{sT0}, v17")
            P(f"s_lshl_b32 s{sT0}, s{sWAVE}, 5")
            P(f"v_add_u32 v17, s{sT0}, v17")
        else:
            self.mk(SW, 66, NBYTES['wqkv'])
            self.NS, self.WCH, self.WROW, self.NCB = 6, 8192, 128, 2
            P("v_lshrrev_b32 v2, 3, v1")
            P("v_mul_u32_u24 v2, 3072, v2")
            P("v_bfe_u32 v3, v1, 4, 1")
            P("v_lshlrev_b32 v3, 2, v3")
            P("v_and_b32 v11, 7, v1")
            P("v_xor_b32 v3, v3, v11")
            P("v_lshl_add_u32 v8, v3, 4, v2")
            P(f"v_add_u32 v9, {8*3072-1024}, v8")
            P(f"s_lshl_b32 s{sT0}, s{sST}, 7")
            P(f"s_mul_i32 s{sT2}, s{sWAVE}, {16*3072}")
            P(f"s_add_u32 s{sWOFF}, s{sT0}, s{sT2}")
            P(f"s_lshl_b32 s{sLW}, s{sWAVE}, 11")
            P(f"s_add_u32 s{sLW}, s{sLW}, 65536")
            self.tr128_addrs(P, 16, 65536)
            P("v_lshrrev_b32 v2, 4, v1")
            P("v_bfe_u32 v3, v1, 2, 2")
            P("v_lshl_add_u32 v18, v2, 3, v3")
            P("v_lshlrev_b32 v18, 7, v18")
            P("v_lshrrev_b32 v3, 1, v3")
            P(f"s_lshr_b32 s{sT0}, s{sWAVE}, 1")
            P(f"v_xor_b32 v3, s{sT0}, v3")
            P("v_lshl_add_u32 v18, v3, 6, v18")
            P("v_and_b32 v11, 3, v1")
            P("v_lshl_add_u32 v18, v11, 3, v18")
            P(f"s_and_b32 s{sT0}, s{sWAVE}, 1")
            P(f"s_lshl_b32 s{sT0}, s{sT0}, 5")
            P(f"s_add_u32 s{sT0}, s{sT0}, 65536")
            P(f"v_add_u32 v18, s{sT0}, v18")
            P("v_and_b32 v3, 15, v1")
            P("v_xor_b32 v2, v2, v3")
            P("v_lshlrev_b32 v19, 10, v3")
            P("v_lshl_add_u32 v19, v2, 4, v19")
            P(f"v_add_u32 v19, {self.HALO}, v19")

    def tr128_addrs(self, P, dst, base, sbase=None):
        P("v_lshrrev_b32 v2, 4, v1")
        P("v_bfe_u32 v3, v1, 2, 2")
        P(f"v_lshrrev_b32 v{dst}, 1, v2")
        P(f"v_lshl_add_u32 v{dst}, v{dst}, 3, v3")
        P(f"v_lshlrev_b32 v{dst}, 7, v{dst}")
        P("v_lshrrev_b32 v3, 1, v3")
        P(f"v_lshl_add_u32 v{dst}, v3, 6, v{dst}")
        P("v_and_b32 v2, 1, v2")
        P(f"v_lshl_add_u32 v{dst}, v2, 5, v{dst}")
        P("v_and_b32 v2, 3, v1")
        P(f"v_lshl_add_u32 v{dst}, v2, 3, v{dst}")
        if sbase is not None:
            P(f"v_add_u32 v{dst}, s{sbase}, v{dst}")
        if base:
            P(f"v_add_u32 v{dst}, {base}, v{dst}")
        P(f"v_xor_b32 v{dst+1}, 64, v{dst}")

    def issue_x(self, P, c):
        P(f"s_add_u32 m0, s{sLX}, {(c % 4) * 4096}")
        P(f"s_add_u32 s{sT0}, s{sXOFF}, {c * 128}")
        return [P.VM(f"buffer_load_dwordx4 v{4+i}, {srd(SX)}, s{sT0} offen offset:{1024*i} lds") for i in range(4)]

    def issue_w(self, P, z, cc):
        gi, c = divmod(cc, 8)
        ld = 2752 if z else 3072
        P(f"s_add_u32 m0, s{sLW}, {(cc % self.NS) * self.WCH}")
        if z:
            P(f"s_add_u32 s{sT1}, s{sWOFF if gi == 0 else 63}, {c * 64 * ld}")
        else:
            P(f"s_add_u32 s{sT1}, s{sWOFF}, {c * 64 * ld + gi * 1024}")
        return [P.VM(f"buffer_load_dwordx4 v{8+p}, {srd(SW)}, s{sT1} offen offset:{1024*p} lds") for p in range(3 if z else 2)]

    def issue_halo(self, P):
        hs = []
        P(f"s_lshl_b32 s{sT2}, s{sWAVE}, 2")
        for i in range(4):
            P(f"s_add_u32 s{sT0}, s{sT2}, {i}")
            P(f"v_xor_b32 v2, s{sT0}, v1")
            P("v_lshlrev_b32 v2, 4, v2")
            P(f"s_lshl_b32 s{sT1}, s{sT0}, 10")
            P(f"s_add_u32 m0, s{sT1}, {self.HALO}")
            P(f"s_lshl_b32 s{sT3}, s{sRB}, 17")
            P(f"s_add_u32 s{sT1}, s{sT1}, s{sT3}")
            P(f"s_sub_u32 s{sT1}, s{sT1}, 16384")
            P(f"s_cmp_eq_u32 s{sRB}, 0")
            P(f"s_cselect_b32 s{sT1}, 0x7fff0000, s{sT1}")
            hs.append(P.VM(f"buffer_load_dwordx4 v2, {srd(SX)}, s{sT1} offen lds"))
        return hs

    def gemm_group(self, P, z, gi, acc, st):
        NS, WCH, WROW, NCB = self.NS, self.WCH, self.WROW, self.NCB
        first = gi == 0
        total = 8 * st["ng"]
        halo = (not z) and gi > 0
        WF = [32, 44]
        EF = [56, 60]
        XT = [64, 68]
        EA = [72, 76]
        nex = 2 if z else 1
        for e in range(nex):
            pass
        reads = {}

        def R(c, jj):
            cc = gi * 8 + c
            base = (cc % NS) * WCH
            j = c * 4 + jj
            t = []
            if first:
                t.append(f"ds_read_b128 {ar(4*j)}, v{12+jj} offset:{(c % 4) * 4096}")
            for cb in range(NCB):
                for m in range(2):
                    d = WF[j & 1] + 4 * cb + 2 * m
                    if z:
                        t.append(f"ds_read_b64_tr_b16 {vr(d,2)}, v16 offset:{base + (16*jj + 4*m) * 192 + 64*cb}")
                    else:
                        t.append(f"ds_read_b64_tr_b16 {vr(d,2)}, v{16+cb} offset:{base + (16*jj + 4*m) * 128}")
            if first:
                t.append(f"ds_read_b128 {vr(XT[j&1])}, v{12+jj} offset:{(c % 4) * 4096}")
            if jj & 1:
                j2 = jj >> 1
                for e in range(nex):
                    for m in range(2):
                        a = (17 + e) if z else 18
                        t.append(f"ds_read_b64_tr_b16 {vr(EF[e] + 2*m, 2)}, v{a} offset:{base + (32*j2 + 4*m) * WROW}")
                if halo:
                    J2 = j >> 1
                    t.append(("x", f"v_xor_b32 v2, {(J2 & 3) << 6}, v19"))
                    t.append(f"ds_read_b128 {vr(XT[0])}, v2 offset:{256 * (J2 >> 2)}")
            return t

        def M(c, jj):
            j = c * 4 + jj
            t = []
            for cb in range(NCB):
                a = acc + 16 * cb
                cin = "0" if j == 0 else vr(a, 16)
                t.append(f"v_mfma_f32_32x32x16_bf16 {vr(a,16)}, {vr(WF[j&1] + 4*cb)}, {ar(4*j)}, {cin}")
            if jj & 1:
                for e in range(nex):
                    cin = "0" if j == 1 else vr(EA[e])
                    b = vr(XT[0]) if halo else "v[20:23]"
                    t.append(f"v_mfma_f32_16x16x32_bf16 {vr(EA[e])}, {vr(EF[e])}, {b}, {cin}")
            v = []
            if first:
                for i in range(4):
                    v.append(f"v_dot2c_f32_bf16 v24, s{sONES}, v{XT[j&1]+i}")
                    v.append(f"v_dot2c_f32_bf16 v25, v{XT[j&1]+i}, v{XT[j&1]+i}")
            if halo and gi == 1 and (jj & 1):
                for i in range(4):
                    v.append(f"v_dot2c_f32_bf16 v80, s{sONES}, v{XT[0]+i}")
                    v.append(f"v_dot2c_f32_bf16 v81, v{XT[0]+i}, v{XT[0]+i}")
            return t, v

        def emit_reads(lst):
            hs = []
            for x in lst:
                if isinstance(x, tuple):
                    P(x[1])
                else:
                    hs.append(P.LG(x))
            return hs

        def step(rd, mm):
            hs = []
            mf, va = mm if mm else ([], [])
            if not mf:
                return emit_reads(rd)
            n = len(mf)
            per = (len(rd) + n - 1) // n
            pv = (len(va) + n - 1) // n
            for i, m in enumerate(mf):
                P(m)
                hs += emit_reads(rd[i * per:(i + 1) * per])
                for x in va[i * pv:(i + 1) * pv]:
                    P(x)
            return hs

        prev = None
        allr = []
        for c in range(8):
            cc = gi * 8 + c
            P.C(f"group {gi} chunk {c}")
            P.W(allr, st["hw"][cc], st["hx"][c] if first else None, st.get("pre") if cc == 0 else None)
            if cc == 0:
                P(f"v_add_u32 v30, 1, v30")
                P(f"v_readfirstlane_b32 s{sNONCE}, v30")
            P("s_barrier")
            if cc == 0:
                st["hn"] = self.nonce_publish(P)
            if c >= 1:
                if first and c + 3 < 8:
                    st["hx"][c + 3] = self.issue_x(P, c + 3)
                if cc - 1 + NS < total:
                    st["hw"][cc - 1 + NS] = self.issue_w(P, z, cc - 1 + NS)
                if first and (not z) and c == 5:
                    st["hh"] = self.issue_halo(P)
            for jj in range(4):
                rd = R(c, jj)
                if prev is not None:
                    P.W(prev[0])
                    hs = step(rd, M(*prev[1]))
                else:
                    hs = step(rd, None)
                prev = (hs, (c, jj))
                allr = hs
        P.W(prev[0])
        step([], M(*prev[1]))
        CS = self.CS + (gi & 1) * 512
        P("s_mov_b32 exec_lo, 0x00010001")
        P("s_mov_b32 exec_hi, 0x00010001")
        hs = []
        for e in range(nex):
            hs.append(P.LG(f"ds_write_b128 v{82+e}, {vr(EA[e])} offset:{CS}"))
        P("s_mov_b64 exec, -1")
        P.W(hs)
        if (not z) and gi == 0:
            P.W(st["hh"])
            skip = P.lab("ones")
            P(f"s_cmp_lg_u32 s{sWAVE}, 0")
            P(f"s_cbranch_scc1 {skip}")
            P("v_lshlrev_b32 v2, 4, v1")
            P(f"ds_write_b128 v2, v[20:23] offset:{self.HALO}" if self.HALO < 65536 else f"v_add_u32 v2, {self.HALO}, v2\nds_write_b128 v2, v[20:23]")
            P("s_waitcnt lgkmcnt(0)")
            P.L(skip)
        P("s_barrier")
        cc = gi * 8 + 8
        if cc - 1 + NS < total:
            st["hw"][cc - 1 + NS] = self.issue_w(P, z, cc - 1 + NS)
        return CS

    def cs_addrs(self, P, z):
        P("v_lshrrev_b32 v2, 4, v1")
        P("v_lshlrev_b32 v2, 4, v2")
        P(f"s_lshl_b32 s{sT0}, s{sWAVE}, 6")
        P(f"s_add_u32 s{sT0}, s{sT0}, {self.CSB}")
        P(f"v_add_u32 v82, s{sT0}, v2")
        if z:
            P(f"s_and_b32 s{sT0}, s{sWAVE}, 1")
            P(f"s_lshl_b32 s{sT0}, s{sT0}, 6")
            P(f"s_add_u32 s{sT0}, s{sT0}, {self.CSB + 256}")
            P(f"v_add_u32 v83, s{sT0}, v2")
        P("v_lshrrev_b32 v2, 5, v1")
        P("v_lshlrev_b32 v84, 4, v2")
        P(f"v_add_u32 v84, {self.CSB}, v84")

    def ln_params(self, P, vs, vq, dst, n, t):
        P(f"v_mul_f32 v{dst}, {f2u(-1.0/n)}, v{vs}")
        P(f"v_mul_f32 v{t}, {f2u(1.0/n)}, v{vq}")
        P(f"v_fma_f32 v{t}, -v{dst}, v{dst}, v{t}")
        P(f"v_max_f32 v{t}, 0, v{t}")
        P(f"v_add_f32 v{t}, {f2u(1e-5)}, v{t}")
        P(f"v_rsq_f32 v{dst+1}, v{t}")

    def fold(self, P, acc, nq, CS, mr=26, T=32):
        hs = [P.LG(f"ds_read_b128 {vr(T + 4*q)}, v84 offset:{CS + 32*q}") for q in range(nq)]
        for q in range(nq):
            P.W(hs[q])
            for p in range(2):
                a = vr(acc + 4*q + 2*p, 2)
                P(f"v_pk_fma_f32 {a}, {vr(T + 4*q + 2*p, 2)}, {vr(mr,2)}, {a} op_sel_hi:[1,0,1]")
        for q in range(nq):
            for p in range(2):
                a = vr(acc + 4*q + 2*p, 2)
                P(f"v_pk_mul_f32 {a}, {a}, {vr(mr,2)} op_sel:[0,1] op_sel_hi:[1,1]")

    def gelu(self, P, acc, npairs, stats, T=32):
        for b in range(0, npairs, 4):
            ys = [acc + 2 * (b + i) for i in range(4)]
            ts = [T + 2 * i for i in range(4)]
            for y, t in zip(ys, ts):
                P(f"v_pk_mul_f32 {vr(t,2)}, {vr(y,2)}, {vr(y,2)}")
            for y, t in zip(ys, ts):
                P(f"v_pk_fma_f32 {vr(t,2)}, {vr(t,2)}, v[28:29], v[28:29] op_sel:[0,0,1] op_sel_hi:[1,0,1]")
            for y, t in zip(ys, ts):
                P(f"v_pk_mul_f32 {vr(t,2)}, {vr(t,2)}, {vr(y,2)}")
            for y, t in zip(ys, ts):
                P(f"v_exp_f32 v{t}, v{t}")
                P(f"v_exp_f32 v{t+1}, v{t+1}")
            for y, t in zip(ys, ts):
                P(f"v_pk_add_f32 {vr(t,2)}, {vr(t,2)}, 1.0 op_sel_hi:[1,0]")
            for y, t in zip(ys, ts):
                P(f"v_rcp_f32 v{t}, v{t}")
                P(f"v_rcp_f32 v{t+1}, v{t+1}")
            for y, t in zip(ys, ts):
                P(f"v_pk_mul_f32 {vr(y,2)}, {vr(y,2)}, {vr(t,2)}")
            if stats:
                for i, y in enumerate(ys):
                    if b == 0 and i == 0:
                        P(f"v_pk_mul_f32 v[88:89], {vr(y,2)}, {vr(y,2)}")
                        P(f"v_pk_add_f32 v[86:87], {vr(y,2)}, 0 op_sel_hi:[1,0]")
                    else:
                        P(f"v_pk_fma_f32 v[88:89], {vr(y,2)}, {vr(y,2)}, v[88:89]")
                        P(f"v_pk_add_f32 v[86:87], {vr(y,2)}, v[86:87]")

    WSPREG = [("a", 128), ("a", 160), ("a", 192), ("a", 224), ("v", 192), ("v", 224), ("a", 0), ("a", 32)]

    def wsp_reg(self, j, tb):
        k, b = self.WSPREG[(j >> 3) * 2 + tb]
        b += 4 * (j & 7)
        return f"{k}[{b}:{b+3}]"

    def wsp_setup(self, P):
        P("v_lshrrev_b32 v2, 4, v1")
        P("v_and_b32 v3, 15, v1")
        P("v_xor_b32 v3, v3, v2")
        P("v_lshlrev_b32 v2, 12, v2")
        P("v_lshl_add_u32 v4, v3, 4, v2")
        for i in range(1, 4):
            P(f"v_xor_b32 v{4+i}, {i << 6}, v4")
            P(f"v_add_u32 v{4+i}, {i * (16384 - 1024)}, v{4+i}")
        P("v_and_b32 v2, 31, v1")
        P("v_lshlrev_b32 v12, 8, v2")
        P("v_and_b32 v2, 15, v1")
        P("v_lshrrev_b32 v3, 5, v1")
        P("v_xor_b32 v2, v2, v3")
        P("v_lshl_add_u32 v12, v2, 4, v12")
        P(f"v_add_u32 v12, s{sLX}, v12")
        P(f"s_lshl_b32 s{sXOFF}, s{sMT}, 18")
        P(f"s_lshl_b32 s{sT0}, s{sWAVE}, 10")
        P(f"s_add_u32 s{sXOFF}, s{sXOFF}, s{sT0}")

    def wsp_issue(self, P, gq):
        kq, tb = gq >> 1, gq & 1
        hs = []
        for hf in range(2):
            P(f"s_add_u32 m0, s{sLX}, {(gq & 1) * 8192 + hf * 4096}")
            P(f"s_add_u32 s{sT0}, s{sXOFF}, {(32 * tb + 16 * hf) * 4096 + kq * 256}")
            hs += [P.VM(f"buffer_load_dwordx4 v{4+i}, {srd(SWSP)}, s{sT0} offen offset:{1024*i} lds") for i in range(4)]
        return hs

    def wsp_read(self, P, gq):
        hs = []
        for jj in range(8):
            a = 12 if jj == 0 else 13 + (jj & 1)
            if jj:
                P(f"v_xor_b32 v{a}, {jj << 5}, v12")
            hs.append(P.LG(f"ds_read_b128 {self.wsp_reg((gq >> 1) * 8 + jj, gq & 1)}, v{a} offset:{(gq & 1) * 8192}"))
        return hs

    def wsp_simple(self, P):
        self.wsp_setup(P)
        h = {0: self.wsp_issue(P, 0), 1: self.wsp_issue(P, 1)}
        for gq in range(8):
            P.W(h[gq])
            r = self.wsp_read(P, gq)
            P.W(r)
            if gq + 2 < 8:
                h[gq + 2] = self.wsp_issue(P, gq + 2)

    def role_z(self, P):
        self.CSB, self.CS = 65536 + 61440, 0
        TR = self.CSB + 1024
        self.p1_setup(P, True)
        st = dict(ng=2, hx={}, hw={})
        st["pre"] = self.nonce_load(P)
        for c in range(5):
            st["hw"][c] = self.issue_w(P, True, c)
            if c < 4:
                st["hx"][c] = self.issue_x(P, c)
        self.late_srds(P)
        self.cs_addrs(P, True)
        P(f"v_mov_b32 v28, {f2u(-2*LOG2E*0.7978845608028654*0.044715)}")
        P(f"v_mov_b32 v29, {f2u(-2*LOG2E*0.7978845608028654)}")
        self.stamp(P, "issued")
        CS = self.gemm_group(P, True, 0, 96, st)
        self.stamp(P, "gemm_a")
        hx = self.xcc_issue(P)
        self.half_sum(P, 24, 85)
        self.half_sum(P, 25, 85)
        self.ln_params(P, 24, 25, 26, 512, 85)
        self.fold(P, 96, 12, CS)
        self.gelu(P, 96, 24, True)
        P("v_add_f32 v86, v86, v87")
        P("v_add_f32 v88, v88, v89")
        self.half_sum(P, 86, 85)
        self.half_sum(P, 88, 85)
        self.xcc_check(P, hx)
        P(f"v_mov_b32 v87, s{sNONCE}")
        P(f"v_mov_b32 v89, s{sNONCE}")
        P(f"s_lshl_b32 s{sT0}, s{sRB}, 2")
        P(f"s_add_u32 s{sT0}, s{sT0}, s{sWAVE}")
        P(f"s_lshl_b32 s{sK}, s{sT0}, 12")
        P(f"s_add_u32 s{sK}, s{sK}, {WS_STATS}")
        P(f"s_lshl_b32 s{sT0}, s{sST}, 9")
        P(f"s_add_u32 s{sT2}, s{sK}, s{sT0}")
        P("v_lshlrev_b32 v90, 4, v1")
        P("s_mov_b32 exec_hi, 0")
        self.dual_store(P, [f"buffer_store_dwordx4 v[86:89], v90, {srd(SWS)}, s{sT2} offen"])
        P("s_mov_b64 exec, -1")
        self.stamp(P, "stats_pub")
        CS = self.gemm_group(P, True, 1, 144, st)
        self.stamp(P, "gemm_b")
        loads = [f"buffer_load_dwordx4 {vr(32+4*i)}, v90, {srd(SWS)}, s{sK} offen offset:{1024*i} sc1" for i in range(4)]
        P.W([P.VM(l) for l in loads])
        def chk(Q):
            Q(f"v_xor_b32 v48, s{sNONCE}, v33")
            for r in (35, 37, 39, 41, 43, 45, 47):
                Q(f"v_xor_b32 v49, s{sNONCE}, v{r}")
                Q("v_or_b32 v48, v48, v49")
            Q("v_cmp_ne_u32 vcc, 0, v48")
        self.spin(P, loads, chk, 2)
        P("v_add_f32 v32, v32, v36")
        P("v_add_f32 v40, v40, v44")
        P("v_add_f32 v34, v34, v38")
        P("v_add_f32 v42, v42, v46")
        P("v_add_f32 v32, v32, v40")
        P("v_add_f32 v34, v34, v42")
        self.half_sum(P, 32, 85)
        self.half_sum(P, 34, 85)
        self.ln_params(P, 32, 34, 50, 688, 85)
        P("v_mul_f32 v50, v50, v51")
        for p in range(24):
            a = vr(96 + 2*p, 2)
            P(f"v_pk_fma_f32 {a}, {a}, v[50:51], v[50:51] op_sel:[0,1,0] op_sel_hi:[1,1,0]")
        for p in range(24):
            P(f"v_cvt_pk_bf16_f32 v{96+p}, v{96+2*p}, v{97+2*p}")
        P("v_and_b32 v2, 31, v1")
        P("v_mul_u32_u24 v2, 200, v2")
        P("v_lshrrev_b32 v3, 5, v1")
        P("v_lshl_add_u32 v2, v3, 3, v2")
        P(f"s_mul_i32 s{sT0}, s{sWAVE}, 6400")
        P(f"s_add_u32 s{sT0}, s{sT0}, {TR}")
        P(f"v_add_u32 v2, s{sT0}, v2")
        hs = [P.LG(f"ds_write_b64 v2, {vr(96+2*q,2)} offset:{(q >> 2) * 64 + (q & 3) * 16}") for q in range(12)]
        P("v_lshrrev_b32 v3, 4, v1")
        P("v_bfe_u32 v11, v1, 2, 2")
        P("v_lshrrev_b32 v52, 1, v3")
        P("v_lshl_add_u32 v52, v52, 3, v11")
        P("v_mul_u32_u24 v52, 200, v52")
        P("v_and_b32 v3, 1, v3")
        P("v_lshl_add_u32 v52, v3, 5, v52")
        P("v_and_b32 v3, 3, v1")
        P("v_lshl_add_u32 v52, v3, 3, v52")
        P(f"v_add_u32 v52, s{sT0}, v52")
        P.W(hs)
        hs = []
        for t in range(2):
            for cb in range(3):
                for m in range(2):
                    hs.append(P.LG(f"ds_read_b64_tr_b16 {vr(120 + (t*3+cb)*4 + 2*m, 2)}, v52 offset:{(16*t + 4*m) * 200 + 64*cb}"))
        P(f"s_mul_i32 s{sT0}, s{sST}, 393216")
        P(f"s_lshl_b32 s{sT1}, s{sRB}, 2")
        P(f"s_add_u32 s{sT1}, s{sT1}, s{sWAVE}")
        P(f"s_mul_i32 s{sT2}, s{sT1}, 6144")
        P(f"s_add_u32 s{sT0}, s{sT0}, s{sT2}")
        P(f"s_add_u32 s{sT0}, s{sT0}, {WS_Z2N}")
        P(f"s_add_u32 s{sT2}, s{sT0}, 3072")
        hst = []
        for i in range(6):
            P.W(hs[2*i+1])
            hst.append(P.VM(f"buffer_store_dwordx4 {vr(120+4*i)}, v90, {srd(SWS)}, s{sT0 if i < 3 else sT2} offen offset:{1024*(i%3)} sc1"))
        self.stamp(P, "z2n_st")
        self.fold(P, 144, 12, CS)
        self.gelu(P, 144, 24, False)
        for p in range(24):
            P(f"v_cvt_pk_bf16_f32 v{144+p}, v{144+2*p}, v{145+2*p}")
        P.W(hst)
        P(f"s_lshl_b32 s{sT0}, s{sST}, 6")
        P(f"s_lshl_b32 s{sT1}, s{sRB}, 2")
        P(f"s_add_u32 s{sT1}, s{sT1}, s{sWAVE}")
        P(f"s_add_u32 s{sT0}, s{sT0}, s{sT1}")
        P(f"s_lshl_b32 s{sT0}, s{sT0}, 7")
        P(f"s_add_u32 s{sT0}, s{sT0}, {WS_FZ2N}")
        P(f"v_mov_b32 v2, s{sNONCE}")
        P("v_mov_b32 v3, 0")
        P("s_mov_b64 exec, 1")
        P.VM(f"buffer_store_dword v2, v3, {srd(SWS)}, s{sT0} offen sc1")
        P("s_mov_b64 exec, -1")
        self.stamp(P, "z2n_flag")
        P(f"s_mul_i32 s{sT2}, s{sT1}, {48*1024}")
        P(f"s_mul_i32 s{sT0}, s{sST}, 6144")
        P(f"s_add_u32 s{sT0}, s{sT0}, s{sT2}")
        P(f"s_add_u32 s{sT0}, s{sT0}, {WS_Z1}")
        P(f"s_add_u32 s{sT2}, s{sT0}, 3072")
        hz1 = self.dual_store(P, [f"buffer_store_dwordx4 {vr(144+4*i)}, v90, {srd(SWS)}, s{sT0 if i < 3 else sT2} offen offset:{1024*(i%3)}" for i in range(6)])
        P(f"s_lshl_b32 s63, s{sT1}, 7")
        P(f"s_lshl_b32 s{sT0}, s{sST}, 2")
        P(f"s_add_u32 s63, s63, s{sT0}")
        P(f"s_add_u32 s63, s63, {WS_FZ1}")
        self.wsp_simple(P)
        self.stamp(P, "wsp")
        self.phase23(P, hz1, st["hn"])

    def role_a(self, P):
        self.HALO = 114688
        KBUF, VBUF = 131072, 65536
        self.CSB, self.CS = KBUF + 20736 + 256, 0
        self.CSB = (self.CSB + 255) // 256 * 256
        assert self.CSB + 1024 <= 163840
        self.p1_setup(P, False)
        st = dict(ng=3, hx={}, hw={})
        st["pre"] = self.nonce_load(P)
        for c in range(6):
            st["hw"][c] = self.issue_w(P, False, c)
            if c < 4:
                st["hx"][c] = self.issue_x(P, c)
        self.late_srds(P)
        self.cs_addrs(P, False)
        P("v_mov_b32 v80, 0")
        P("v_mov_b32 v81, 0")
        self.stamp(P, "issued")
        CS = self.gemm_group(P, False, 0, 96, st)
        self.stamp(P, "gemm_q")
        hx = self.xcc_issue(P)
        self.half_sum(P, 24, 85)
        self.half_sum(P, 25, 85)
        self.ln_params(P, 24, 25, 26, 512, 85)
        self.fold(P, 96, 8, CS)
        for p in range(16):
            P(f"v_cvt_pk_bf16_f32 v{160+p}, v{96+2*p}, v{97+2*p}")
        for cb in range(2):
            for i in range(4):
                P(f"v_permlane32_swap_b32 v{160+8*cb+i}, v{160+8*cb+4+i}")
        self.xcc_check(P, hx)
        QD = [0, 1, 4, 5, 2, 3, 6, 7]
        P("v_and_b32 v2, 31, v1")
        P(f"s_lshl_b32 s{sT0}, s{sWAVE}, 5")
        P(f"v_add_u32 v2, s{sT0}, v2")
        P("v_lshrrev_b32 v3, 5, v1")
        P("v_mul_u32_u24 v176, 144, v2")
        P("v_mul_u32_u24 v177, 272, v2")
        P("v_lshl_add_u32 v178, v3, 3, v176")
        P(f"v_add_u32 v178, {KBUF + 16*144}, v178")
        P("v_lshl_add_u32 v179, v3, 4, v177")
        P(f"v_add_u32 v179, {VBUF + 16*272}, v179")
        P("v_lshl_add_u32 v176, v3, 5, v176")
        P(f"v_add_u32 v176, {KBUF + 2*144}, v176")
        P("v_lshl_add_u32 v177, v3, 6, v177")
        P(f"v_add_u32 v177, {VBUF + 2*272}, v177")
        P("v_and_b32 v2, 15, v1")
        P("v_lshrrev_b32 v3, 4, v1")
        P("v_mul_u32_u24 v180, 144, v2")
        P("v_lshl_add_u32 v180, v3, 3, v180")
        P(f"s_lshl_b32 s{sT0}, s{sWAVE}, 5")
        P(f"s_add_u32 s{sT0}, s{sT0}, {KBUF}")
        P(f"v_add_u32 v180, s{sT0}, v180")
        P("v_mul_u32_u24 v181, 272, v2")
        P("v_lshl_add_u32 v181, v3, 4, v181")
        P(f"s_lshl_b32 s{sT0}, s{sWAVE}, 6")
        P(f"s_add_u32 s{sT0}, s{sT0}, {VBUF}")
        P(f"v_add_u32 v181, s{sT0}, v181")

        def halo_fold(P):
            for r in range(4):
                P(f"v_mov_b32_dpp v{76+r}, v{72+r} row_newbcast:0 row_mask:0xf bank_mask:0xf")
            for p in range(2):
                P(f"v_pk_fma_f32 {vr(72+2*p,2)}, {vr(76+2*p,2)}, v[182:183], {vr(72+2*p,2)} op_sel_hi:[1,0,1]")
            for p in range(2):
                P(f"v_pk_mul_f32 {vr(72+2*p,2)}, {vr(72+2*p,2)}, v[182:183] op_sel:[0,1] op_sel_hi:[1,1]")

        CS = self.gemm_group(P, False, 1, 128, st)
        self.stamp(P, "gemm_k")
        for v in (80, 81):
            self.half_sum(P, v, 85)
            P(f"v_mov_b32 v85, v{v}")
            P(f"v_permlane16_swap_b32 v{v}, v85")
            P(f"v_add_f32 v{v}, v{v}, v85")
        self.ln_params(P, 80, 81, 182, 512, 85)
        halo_fold(P)
        P("v_cvt_pk_bf16_f32 v72, v72, v73")
        P("v_cvt_pk_bf16_f32 v73, v74, v75")
        hk = [P.LG("ds_write_b64 v180, v[72:73]")]
        self.fold(P, 128, 8, CS)
        for p in range(16):
            P(f"v_cvt_pk_bf16_f32 v{128+p}, v{128+2*p}, v{129+2*p}")
        hk += [P.LG(f"ds_write_b64 v178, {vr(128+2*q,2)} offset:{(q>>2)*64 + (q&3)*16}") for q in range(8)]
        CS = self.gemm_group(P, False, 2, 96, st)
        self.stamp(P, "gemm_v")
        halo_fold(P)
        hv = [P.LG("ds_write_b128 v181, v[72:75]")]
        self.fold(P, 96, 8, CS)
        hv += [P.LG(f"ds_write_b128 v179, {vr(96+4*q)} offset:{(q>>2)*128 + (q&3)*32}") for q in range(8)]
        P("v_and_b32 v2, 31, v1")
        P(f"s_lshl_b32 s{sT0}, s{sRB}, 2")
        P(f"s_add_u32 s{sT0}, s{sT0}, s{sWAVE}")
        P(f"s_lshl_b32 s{sT1}, s{sT0}, 5")
        P(f"v_add_u32 v2, s{sT1}, v2")
        for w in range(1, 8):
            P(f"v_cmp_le_u32 s[{64+2*w}:{65+2*w}], {2*w}, v2")
        P(f"v_mov_b32 v184, {f2u(-4e9)}")
        P(f"v_mov_b32 v185, {f2u(0.25*LOG2E)}")
        P(f"s_lshr_b32 s{sT1}, s{sT0}, 1")
        P(f"s_lshl_b32 s{sT1}, s{sT1}, 16")
        P(f"s_and_b32 s{sT2}, s{sWAVE}, 1")
        P(f"s_lshl_b32 s{sT2}, s{sT2}, 10")
        P(f"s_add_u32 s{sT1}, s{sT1}, s{sT2}")
        P(f"s_lshl_b32 s{sT2}, s{sST}, 13")
        P(f"s_add_u32 s{sT1}, s{sT1}, s{sT2}")
        P(f"s_add_u32 s{sK}, s{sT1}, {WS_O}")
        P("v_and_b32 v2, 31, v1")
        P("v_lshlrev_b32 v186, 4, v2")
        P("v_lshrrev_b32 v3, 5, v1")
        P("v_lshl_add_u32 v186, v3, 11, v186")
        P.W(hk, hv)
        P("s_barrier")
        self.stamp(P, "kv_ready")
        ho = []
        for cb in range(2):
            Lg = 128
            KT = 32
            hs = []
            for w in range(8):
                for e in range(2):
                    hs.append(P.LG(f"ds_read_b128 {vr(KT + 8*w + 4*e)}, v176 offset:{(14 - 2*w) * 144 + cb * 64 + 16*e}"))
                if w == 3 or w == 7:
                    for ww in range(w - 3, w + 1):
                        P.W(hs[2*ww+1])
                        for i in range(8):
                            q = 160 + 8*cb + QD[i]
                            if i == 0:
                                P(f"v_dot2_f32_bf16 v{Lg+ww}, v{q}, v{KT+8*ww+i}, 0")
                            elif i == 1:
                                P(f"v_dot2_f32_bf16 v{Lg+ww}, v{q}, v{KT+8*ww+i}, v{Lg+ww}")
                            else:
                                P(f"v_dot2_f32_bf16 v{Lg+ww}, v{q}, v{KT+8*ww+i}, v{Lg+ww}")
            def vread(w):
                return [P.LG(f"ds_read_b128 {vr(KT + 16*(w&3) + 4*e)}, v177 offset:{(14 - 2*w) * 272 + cb * 128 + 16*e}") for e in range(4)]
            hvr = {w: vread(w) for w in range(2)}
            for w in range(1, 8):
                P(f"v_cndmask_b32 v{Lg+w}, v184, v{Lg+w}, s[{64+2*w}:{65+2*w}]")
            P(f"v_max3_f32 v136, v{Lg}, v{Lg+1}, v{Lg+2}")
            P(f"v_max3_f32 v137, v{Lg+3}, v{Lg+4}, v{Lg+5}")
            P(f"v_max3_f32 v136, v136, v{Lg+6}, v{Lg+7}")
            P("v_max_f32 v136, v136, v137")
            P("v_mul_f32 v136, v136, v185")
            for w in range(8):
                P(f"v_fma_f32 v{Lg+w}, v{Lg+w}, v185, -v136")
            for w in range(8):
                P(f"v_exp_f32 v{Lg+w}, v{Lg+w}")
            P(f"v_pk_add_f32 v[136:137], {vr(Lg,2)}, {vr(Lg+2,2)}")
            P(f"v_pk_add_f32 v[138:139], {vr(Lg+4,2)}, {vr(Lg+6,2)}")
            P("v_pk_add_f32 v[136:137], v[136:137], v[138:139]")
            P("v_add_f32 v136, v136, v137")
            P("v_rcp_f32 v136, v136")
            O = 140
            for w in range(8):
                if w + 2 < 8:
                    hvr[w + 2] = vread(w + 2)
                P.W(hvr[w])
                sel = "op_sel:[0,1,0] op_sel_hi:[1,1,1]" if w & 1 else "op_sel_hi:[1,0,1]"
                for p in range(8):
                    src = vr(KT + 16*(w&3) + 2*p, 2)
                    if w == 0:
                        P(f"v_pk_mul_f32 {vr(O+2*p,2)}, {src}, {vr(Lg,2)} op_sel_hi:[1,0]")
                    else:
                        P(f"v_pk_fma_f32 {vr(O+2*p,2)}, {src}, {vr(Lg + (w & ~1),2)}, {vr(O+2*p,2)} {sel}")
            for p in range(8):
                P(f"v_pk_mul_f32 {vr(O+2*p,2)}, {vr(O+2*p,2)}, v[136:137] op_sel_hi:[1,0]")
            D = 96 + 8 * cb
            for p in range(8):
                P(f"v_cvt_pk_bf16_f32 v{D+p}, v{O+2*p}, v{O+2*p+1}")
            if cb:
                P(f"s_add_u32 s{sK}, s{sK}, 4096")
            ho += self.dual_store(P, [f"buffer_store_dwordx4 {vr(D+4*e)}, v186, {srd(SWS)}, s{sK} offen offset:{512*e}" for e in range(2)])
        self.stamp(P, "attn")
        P(f"s_lshl_b32 s{sT0}, s{sRB}, 2")
        P(f"s_add_u32 s{sT0}, s{sT0}, s{sWAVE}")
        P(f"s_lshr_b32 s63, s{sT0}, 1")
        P(f"s_lshl_b32 s63, s63, 7")
        P(f"s_and_b32 s{sT0}, s{sWAVE}, 1")
        P(f"s_lshl_b32 s{sT1}, s{sST}, 1")
        P(f"s_add_u32 s{sT0}, s{sT0}, s{sT1}")
        P(f"s_lshl_b32 s{sT0}, s{sT0}, 2")
        P(f"s_add_u32 s63, s63, s{sT0}")
        P(f"s_add_u32 s63, s63, {WS_FO}")
        self.wsp_simple(P)
        self.stamp(P, "wsp")
        self.phase23(P, ho, st["hn"])

    def flag_store(self, P, sreg):
        P(f"v_mov_b32 v2, s{sNONCE}")
        P("v_mov_b32 v3, 0")
        P("s_mov_b64 exec, 1")
        self.dual_store(P, [f"buffer_store_dword v2, v3, {srd(SWS)}, s{sreg} offen"])
        P("s_mov_b64 exec, -1")

    def phase23(self, P, hlate, hn):
        PW = 38912
        RD = 32
        def ring(e):
            q = e % RD
            return ar(64 + 4*q) if q < 16 else vr(32 + 4*(q - 16))
        P.W(hlate, hn)
        self.flag_store(P, 63)
        self.nonce_finish(P)
        P("s_barrier")
        P("v_and_b32 v8, 15, v1")
        P("v_lshlrev_b32 v8, 7, v8")
        P(f"s_lshl_b32 s{sT0}, s{sNT}, 2")
        P(f"s_add_u32 s{sT0}, s{sT0}, s{sWAVE}")
        P(f"s_lshl_b32 s{sT0}, s{sT0}, 11")
        P(f"s_add_u32 s{sT0}, s{sT0}, {WS_FZ2N}")
        P(f"v_add_u32 v8, s{sT0}, v8")
        ld = [f"buffer_load_dword v9, v8, {srd(SWS)}, 0 offen sc1"]
        hp = P.VM(ld[0])
        P("v_lshlrev_b32 v28, 4, v1")
        P("v_and_b32 v2, 31, v1")
        P(f"s_cmp_eq_u32 s{sNT}, 7")
        P(f"s_cselect_b32 s{sT0}, 15, 63")
        P(f"s_cselect_b32 s{sT1}, {OOB}, 0")
        P(f"v_cmp_lt_u32 vcc, s{sT0}, v2")
        P(f"v_mov_b32 v3, {OOB}")
        P("v_cndmask_b32 v10, v28, v3, vcc")
        P(f"v_or_b32 v11, s{sT1}, v28")
        P(f"s_mul_i32 s{sK}, s{sNT}, 393216")
        P(f"s_mul_i32 s{sT0}, s{sWAVE}, 98304")
        P(f"s_add_u32 s{sK}, s{sK}, s{sT0}")
        P(f"s_add_u32 s{sK}, s{sK}, {WS_Z2N}")
        P(f"s_mul_i32 s{sLW}, s{sWAVE}, {PW}")
        self.tr128_addrs(P, 16, 0, sLW)
        P("v_lshrrev_b32 v2, 3, v1")
        P("v_lshlrev_b32 v2, 10, v2")
        P("v_bfe_u32 v3, v1, 4, 1")
        P("v_lshlrev_b32 v3, 2, v3")
        P("v_and_b32 v18, 7, v1")
        P("v_xor_b32 v3, v3, v18")
        P("v_lshl_add_u32 v18, v3, 4, v2")
        P(f"s_lshl_b32 s{sWOFF}, s{sNT}, 7")
        P(f"s_lshl_b32 s{sT0}, s{sWAVE}, 17")
        P(f"s_add_u32 s{sXOFF}, s{sWOFF}, s{sT0}")
        P(f"s_mul_i32 s{sT0}, s{sWAVE}, {176*1024}")
        P(f"s_add_u32 s{sWOFF}, s{sWOFF}, s{sT0}")
        P.W(hp)
        self.spin(P, ld, lambda Q: Q(f"v_cmp_ne_u32 vcc, s{sNONCE}, v9"), 3)
        self.stamp(P, "z2n_ok")

        hb = {}
        def issue_b(e):
            if e < 96:
                j, cb = divmod(e, 3)
                if cb == 0 and j:
                    P(f"s_add_u32 s{sK}, s{sK}, 3072")
                hb[e] = P.VM(f"buffer_load_dwordx4 {ring(e)}, v{10 if cb == 0 else 11}, {srd(SWS)}, s{sK} offen offset:{1024*cb} sc1")
        hw3 = []
        def w3_dma(i):
            if i < 16:
                P(f"s_add_u32 m0, s{sLW}, {i * 1024}")
                P(f"s_add_u32 s{sT0}, s{sXOFF}, {i * 8192}")
                hw3.append(P.VM(f"buffer_load_dwordx4 v18, {srd(SWO)}, s{sT0} offen lds"))
            else:
                P(f"s_add_u32 m0, s{sLW}, {i * 1024}")
                P(f"s_add_u32 s{sT0}, s{sWOFF}, {(i - 16) * 8192}")
                hw3.append(P.VM(f"buffer_load_dwordx4 v18, {srd(SWOUT)}, s{sT0} offen lds"))
        def w3reg(i, nb):
            r = 8 * i + 4 * nb
            return ("a", 128 + r) if r < 128 else ("v", 192 + r - 128)
        hw3r = []
        def w3_read(i, nb, m):
            k, b = w3reg(i, nb)
            hw3r.append(P.LG(f"ds_read_b64_tr_b16 {k}[{b+2*m}:{b+2*m+1}], v{16+nb} offset:{(16*i + 4*m) * 128}"))
        for e in range(RD):
            issue_b(e)
        dma_list = list(range(38))
        rd_list = [(i, nb, m) for i in range(19) for nb in range(2) for m in range(2)]
        ACC = 96
        hmisc = {}
        for j in range(32):
            P.C(f"phase 2 step {j}")
            for fb in range(3):
                e = 3 * j + fb
                P.W(hb[e])
                for tb in range(2):
                    a = vr(ACC + (fb * 2 + tb) * 16, 16)
                    P(f"v_mfma_f32_32x32x16_bf16 {a}, {ring(e)}, {self.wsp_reg(j, tb)}, {'0' if j == 0 else a}")
                issue_b(e + RD)
                if j >= 1 and dma_list and fb != 1:
                    w3_dma(dma_list.pop(0))
                if j >= 22 and rd_list:
                    for _ in range(3):
                        if rd_list:
                            i, nb, m = rd_list[0]
                            k, b = w3reg(i, nb)
                            if k == "v" and j < 25:
                                break
                            P.W(hw3[2 * i + 1])
                            w3_read(*rd_list.pop(0))
            if j == 20:
                P("v_and_b32 v2, 7, v1")
                P(f"s_lshl_b32 s{sT0}, s{sMT}, 1")
                P(f"s_and_b32 s{sT1}, s{sWAVE}, 1")
                P(f"s_add_u32 s{sT0}, s{sT0}, s{sT1}")
                P(f"s_lshl_b32 s{sT2}, s{sT0}, 7")
                P(f"s_add_u32 s{sT2}, s{sT2}, {WS_FZ1}")
                P(f"v_lshl_add_u32 v8, v2, 2, s{sT2}")
                P("v_and_b32 v2, 15, v1")
                P(f"s_lshl_b32 s{sT2}, s{sMT}, 7")
                P(f"s_add_u32 s{sT2}, s{sT2}, {WS_FO}")
                P(f"v_lshl_add_u32 v3, v2, 2, s{sT2}")
                P("v_cmp_gt_u32 vcc, 32, v1")
                P("v_cndmask_b32 v8, v3, v8, vcc")
                hmisc["f"] = P.VM(ld[0])
                P(f"s_mul_i32 s{sT3}, s{sT0}, {48*1024}")
                P(f"s_mul_i32 s{sT2}, s{sNT}, 6")
                P(f"s_add_u32 s{sT2}, s{sT2}, 1")
                P(f"s_cmp_eq_u32 s{sNT}, 7")
                P(f"s_cselect_b32 s{sT2}, 0, s{sT2}")
                P(f"s_lshr_b32 s{sT1}, s{sWAVE}, 1")
                P(f"s_add_u32 s64, s{sT2}, s{sT1}")
                P(f"s_lshl_b32 s{sT2}, s64, 10")
                P(f"s_add_u32 s{sT3}, s{sT3}, s{sT2}")
                P(f"s_add_u32 s65, s{sT3}, {WS_Z1}")
                P("v_and_b32 v2, 31, v1")
                P(f"s_lshl_b32 s{sT0}, s{sT0}, 5")
                P(f"v_add_lshl_u32 v2, v2, s{sT0}, 1")
                hmisc["b"] = P.VM(f"buffer_load_ushort v29, v2, {srd(SBSP)}, 0 offen")
                P("v_lshrrev_b32 v2, 3, v0")
                P("v_and_b32 v3, 7, v0")
                P("v_lshlrev_b32 v30, 10, v2")
                P("v_lshl_add_u32 v30, v3, 4, v30")
                P(f"s_lshl_b32 s{sT0}, s{sMT}, 16")
                P(f"s_lshl_b32 s{sT1}, s{sNT}, 7")
                P(f"s_add_u32 s{sT0}, s{sT0}, s{sT1}")
                P(f"v_add_u32 v30, s{sT0}, v30")
                P("v_add_u32 v31, 32768, v30")
            if j == 24:
                P.W(hmisc["f"])
                self.spin(P, ld, lambda Q: Q(f"v_cmp_ne_u32 vcc, s{sNONCE}, v9"), 4)
            if j == 25:
                hmisc["z1"] = []
                P(f"s_add_u32 s{sT0}, s65, 4096")
                for fb in range(3):
                    hmisc["z1"].append(P.VM(f"buffer_load_dwordx4 {vr(216+4*fb)}, v28, {srd(SWS)}, s{65 if fb < 2 else sT0} offen offset:{2048*(fb&1)} sc1"))
                hmisc["x"] = [P.VM(f"buffer_load_dwordx4 {vr(228+4*i)}, v{30+i}, {srd(SX)}, 0 offen") for i in range(2)]
                P(f"s_lshl_b32 s{sT0}, s{sMT}, 2")
                P(f"s_add_u32 s{sT0}, s{sT0}, s{sWAVE}")
                P(f"s_lshl_b32 s{sT0}, s{sT0}, 14")
                P(f"s_add_u32 s63, s{sT0}, {WS_O}")
            if j >= 26:
                pass
        assert not dma_list
        while rd_list:
            i, nb, m = rd_list[0]
            P.W(hw3[2 * i + 1])
            w3_read(*rd_list.pop(0))
        ho = []
        for i in range(16):
            if i and i % 4 == 0:
                P("s_add_u32 s63, s63, 4096")
            ho.append(P.VM(f"buffer_load_dwordx4 {ring(96 + i)}, v28, {srd(SWS)}, s63 offen offset:{1024*(i%4)} sc1"))
        self.stamp(P, "p2_mfma")
        P(f"v_add_u32 v2, s{sLW}, v28")
        P.W(hw3r)
        hs = [P.LG(f"ds_write_b128 v2, {vr(ACC + 4*i)} offset:{1024*i}") for i in range(24)]
        P(f"s_and_b32 s{sT0}, s{sWAVE}, 1")
        P(f"s_lshl_b32 s{sT0}, s{sT0}, 12")
        P(f"s_lshr_b32 s{sT1}, s{sWAVE}, 1")
        P(f"s_lshl_b32 s{sT1}, s{sT1}, 11")
        P(f"s_add_u32 s{sT0}, s{sT0}, s{sT1}")
        P(f"v_add_u32 v2, s{sT0}, v28")
        P(f"v_add_u32 v3, {2*PW}, v2")
        P.W(hs)
        P("s_barrier")
        G = 96
        T = 32
        def rd2(s, dst):
            return [P.LG(f"ds_read_b128 {vr(dst + 8*fb + 4*e)}, v{2 + (s >> 1)} offset:{(s & 1) * PW + fb * 8192 + e * 1024}") for fb in range(3) for e in range(2)]
        def add2(src):
            for p in range(12):
                P(f"v_pk_add_f32 {vr(G+2*p,2)}, {vr(G+2*p,2)}, {vr(src+2*p,2)}")
        h0 = rd2(0, G)
        h1 = rd2(1, T)
        P.W(h0)
        h2 = rd2(2, T + 24)
        P.W(h1)
        add2(T)
        h3 = rd2(3, T)
        P.W(h2)
        add2(T + 24)
        P.W(h3)
        add2(T)
        P.W(hmisc["b"], hmisc["z1"])
        P("v_lshlrev_b32 v8, 16, v29")
        for p in range(12):
            P(f"v_pk_add_f32 {vr(G+2*p,2)}, {vr(G+2*p,2)}, v[8:9] op_sel_hi:[1,0]")
        for p in range(12):
            P(f"v_lshlrev_b32 v{T+2*p}, 16, v{216+p}")
            P(f"v_and_b32 v{T+2*p+1}, 0xffff0000, v{216+p}")
        for p in range(12):
            P(f"v_pk_mul_f32 {vr(G+2*p,2)}, {vr(G+2*p,2)}, {vr(T+2*p,2)}")
        U = 120
        for p in range(12):
            P(f"v_cvt_pk_bf16_f32 v{U+p}, v{G+2*p}, v{G+2*p+1}")
        for fb in range(3):
            P(f"v_permlane32_swap_b32 v{U+4*fb}, v{U+4*fb+2}")
            P(f"v_permlane32_swap_b32 v{U+4*fb+1}, v{U+4*fb+3}")
        P(f"s_mul_i32 s{sT0}, s{sMT}, 48")
        P(f"s_add_u32 s{sT0}, s{sT0}, s64")
        P(f"s_lshl_b32 s{sT0}, s{sT0}, 1")
        P(f"s_and_b32 s{sT1}, s{sWAVE}, 1")
        P(f"s_add_u32 s{sT0}, s{sT0}, s{sT1}")
        P(f"s_lshl_b32 s{sT0}, s{sT0}, 10")
        P(f"s_add_u32 s{sT0}, s{sT0}, {WS_U}")
        P(f"s_add_u32 s{sT1}, s{sT0}, 4096")
        P(f"s_add_u32 s{sT2}, s{sT0}, 8192")
        P(f"s_cmp_eq_u32 s{sNT}, 7")
        P(f"s_cselect_b32 s{sT1}, 0x7fff0000, s{sT1}")
        P(f"s_cselect_b32 s{sT2}, 0x7fff0000, s{sT2}")
        P(f"s_cselect_b32 s{sT3}, s{sWAVE}, 0")
        P(f"s_cmp_ge_u32 s{sT3}, 2")
        P(f"s_cselect_b32 s{sT0}, 0x7fff0000, s{sT0}")
        hu = self.dual_store(P, [f"buffer_store_dwordx4 {vr(U+4*fb)}, v28, {srd(SWS)}, s{sT0+fb} offen" for fb in range(3)])
        self.stamp(P, "u_st")
        P(f"s_lshl_b32 s{sT3}, s{sMT}, 7")
        P(f"s_add_u32 s{sT3}, s{sT3}, {WS_FU}")
        P("v_and_b32 v8, 31, v1")
        P(f"v_lshl_add_u32 v8, v8, 2, s{sT3}")
        P(f"s_lshl_b32 s66, s{sNT}, 2")
        P(f"s_add_u32 s66, s66, s{sWAVE}")
        P("s_lshl_b32 s66, s66, 2")
        P(f"s_add_u32 s66, s66, s{sT3}")
        P.W(hu)
        self.flag_store(P, 66)
        A3 = 128
        def w3r(i, nb):
            k, b = w3reg(i, nb)
            return f"{k}[{b}:{b+3}]"
        for i in range(8):
            P.W(ho[2*i+1])
            for nb in range(2):
                for tb in range(2):
                    a = vr(A3 + (nb*2+tb)*16, 16)
                    P(f"v_mfma_f32_32x32x16_bf16 {a}, {w3r(i, nb)}, {ring(96 + 2*i + tb)}, {'0' if i == 0 else a}")
            if i == 3:
                hp = P.VM(ld[0])
        P(f"s_mul_i32 s{sT0}, s{sMT}, 48")
        P(f"s_mul_i32 s{sT1}, s{sWAVE}, 11")
        P(f"s_add_u32 s{sT0}, s{sT0}, s{sT1}")
        P(f"s_lshl_b32 s{sT0}, s{sT0}, 11")
        P(f"s_add_u32 s{sK}, s{sT0}, {WS_U}")
        P.W(hp)
        self.spin(P, ld, lambda Q: Q(f"v_cmp_ne_u32 vcc, s{sNONCE}, v9"), 5)
        self.stamp(P, "u_ok")
        def ureg(e):
            return ar(4*e) if e < 16 else vr(32 + 4*(e - 16))
        hul = []
        for e in range(22):
            if e and e % 4 == 0:
                P(f"s_add_u32 s{sK}, s{sK}, 4096")
            if e == 20:
                P(f"s_cmp_eq_u32 s{sWAVE}, 3")
                P(f"s_cselect_b32 s{sK}, 0x7fff0000, s{sK}")
            hul.append(P.VM(f"buffer_load_dwordx4 {ureg(e)}, v28, {srd(SWS)}, s{sK} offen offset:{1024*(e%4)} sc1"))
        P("v_and_b32 v2, 31, v1")
        P("v_mul_u32_u24 v2, 272, v2")
        P("v_lshrrev_b32 v3, 5, v1")
        P("v_lshl_add_u32 v2, v3, 4, v2")
        P(f"v_add_u32 v2, s{sLW}, v2")
        P("v_lshrrev_b32 v3, 3, v0")
        P("v_mul_u32_u24 v3, 272, v3")
        P("v_and_b32 v8, 7, v0")
        P("v_lshl_add_u32 v3, v8, 5, v3")
        P(f"v_add_u32 v8, {2*PW}, v3")
        for i in range(11):
            P.W(hul[2*i+1])
            for nb in range(2):
                for tb in range(2):
                    a = vr(A3 + (nb*2+tb)*16, 16)
                    P(f"v_mfma_f32_32x32x16_bf16 {a}, {w3r(8+i, nb)}, {ureg(2*i + tb)}, {a}")
        self.stamp(P, "p3_mfma")
        P("s_barrier")
        hs = []
        for nb in range(2):
            for tb in range(2):
                for q in range(4):
                    hs.append(P.LG(f"ds_write_b128 v2, {vr(A3 + (nb*2+tb)*16 + 4*q)} offset:{tb*32*272 + (32*nb + 8*q)*4}"))
        P.W(hs)
        P("s_barrier")
        F = 96
        hs = {}
        def rd3(jj, s):
            hs[jj, s] = [P.LG(f"ds_read_b128 {vr(32 + jj*32 + s*8 + 4*e)}, v{3 if s < 2 else 8} offset:{(s&1)*PW + jj*32*272 + 16*e}") for e in range(2)]
        for s in range(4):
            rd3(0, s)
        P.W(hmisc["x"])
        for i in range(8):
            P(f"v_lshlrev_b32 v{F+2*i}, 16, v{228+i}")
            P(f"v_and_b32 v{F+2*i+1}, 0xffff0000, v{228+i}")
        for jj in range(2):
            for s in range(4):
                P.W(hs[jj, s])
                if jj == 0:
                    rd3(1, s)
                for p in range(4):
                    P(f"v_pk_add_f32 {vr(F + 8*jj + 2*p,2)}, {vr(F + 8*jj + 2*p,2)}, {vr(32 + jj*32 + s*8 + 2*p,2)}")
            for p in range(4):
                P(f"v_cvt_pk_bf16_f32 v{112 + 4*jj + p}, v{F + 8*jj + 2*p}, v{F + 8*jj + 2*p + 1}")
            P.VM(f"buffer_store_dwordx4 {vr(112 + 4*jj)}, v{30+jj}, {srd(SOUT)}, 0 offen")
        if self.o.stamps:
            P.W0(vm=True)
            self.stamp(P, "end")
            for i in range(16):
                P(f"v_mov_b32 v{32+i}, s{sSTAMP+i}")
            P(f"s_lshl_b32 s{sT0}, s2, 2")
            P(f"s_add_u32 s{sT0}, s{sT0}, s{sWAVE}")
            P(f"s_lshl_b32 s{sT0}, s{sT0}, 6")
            P(f"s_add_u32 s{sT0}, s{sT0}, {WS_STAMP}")
            P("v_mov_b32 v2, 0")
            P("s_mov_b64 exec, 1")
            for i in range(4):
                P(f"buffer_store_dwordx4 {vr(32+4*i)}, v2, {srd(SWS)}, s{sT0} offen offset:{16*i}")
        if self.o.amp:
            i = self.stamp_names.index(self.o.amp) if self.o.amp in self.stamp_names else 0
            e = self.stamp_names.index("end")
            lab = P.lab("amp")
            P(f"s_sub_u32 s20, s{sSTAMP+i}, s{sSTAMP}")
            P("s_min_u32 s20, s20, 6000")
            P("s_mul_i32 s20, s20, 20")
            P.L(lab)
            P("s_sleep 8")
            P("s_memrealtime s[14:15]")
            P("s_waitcnt lgkmcnt(0)")
            P(f"s_sub_u32 s21, s14, s{sSTAMP+e}")
            P("s_cmp_lt_u32 s21, s20")
            P(f"s_cbranch_scc1 {lab}")
        P("s_endpgm")

    def build(self):
        self.fail_codes = set()
        lines = []
        P0 = Prog("pro")
        self.nstamp_role, self.stamp_names = 0, []
        if self.o.stamps:
            self.stamp(P0, "start")
        self.prologue(P0)
        P0(f"s_cmp_ge_u32 s{sJ}, 16")
        P0("s_cbranch_scc1 .Lrole_a")
        n0 = self.nstamp_role
        names = {}
        bodies = []
        for role, fn in (("z", self.role_z), ("a", self.role_a)):
            P = Prog(role)
            P.items = list(P0.items)
            skip = len(P0.items)
            self.mk = lambda r, pair, n, P=P: (P(f"s_mov_b32 s{r}, s{pair}"), P(f"s_mov_b32 s{r+1}, s{pair+1}"), P(f"s_mov_b32 s{r+2}, {n}"), P(f"s_mov_b32 s{r+3}, 0x20000"))
            self.nstamp_role = n0
            self.stamp_names = self.stamp_names[:n0]
            P.L(f".Lrole_{role}")
            fn(P)
            txt = P.finalize()
            names[role] = list(self.stamp_names)
            print(f"role {role}: max outstanding vm {P.maxvm}, lg {P.maxlg}, nops {P.nnops}, lines {len(txt)}", file=sys.stderr)
            i = txt.index(f".Lrole_{role}:")
            if role == "z":
                bodies += txt
            else:
                bodies += txt[i:]
        for T in self.tail:
            bodies += T.finalize()
        for c in sorted(self.fail_codes):
            bodies += [f".Lfail_{c}:", f"    v_mov_b32 v2, {c}", f"    v_mov_b32 v3, {4*(8+c)}", "    s_mov_b64 exec, 1",
                       f"    buffer_store_dword v2, v3, {srd(SDBG)}, 0 offen", "    s_endpgm"]
        bodies += [".Lend:", "    s_endpgm", ".Lcode_end:"]
        bodies = [l for l in bodies if not l.strip().startswith("; counted")]
        K = NAME + "_kernel"
        s = HEADER_COMMENT
        s += "; @launch grid=(256,1,1) block=(256,1,1) lds=163840\n"
        s += '.amdgcn_target "amdgcn-amd-amdhsa--gfx950"\n.text\n'
        s += f".globl {K}\n.p2align 8\n.type {K},@function\n{K}:\n"
        s += f".set CODE_PIECES, (.Lcode_end - {K}) / 4096\n"
        s += "\n".join(bodies) + "\n"
        s += f""".section .rodata,"a"
.p2align 6
.amdhsa_kernel {K}
  .amdhsa_next_free_vgpr 512
  .amdhsa_next_free_sgpr 102
  .amdhsa_accum_offset 256
  .amdhsa_group_segment_fixed_size 0
  .amdhsa_kernarg_size 88
  .amdhsa_user_sgpr_count 2
  .amdhsa_user_sgpr_kernarg_segment_ptr 1
  .amdhsa_system_sgpr_workgroup_id_x 1
.end_amdhsa_kernel
"""
        self.names = names
        return s

if __name__ == "__main__":
    ap = argparse.ArgumentParser()
    ap.add_argument("out")
    ap.add_argument("--stamps", action="store_true")
    ap.add_argument("--force_global", action="store_true")
    ap.add_argument("--amp", default=None)
    o = ap.parse_args()
    g = Gen(o)
    s = g.build()
    open(o.out, "w").write(s)
    if o.stamps:
        import json
        json.dump(g.names, open(o.out + ".stamps.json", "w"))
```
